```python
import torch

def _softmax(x, axis=-1):
    return torch.softmax(x, dim=axis)
def _gelu(x):
    return torch.nn.functional.gelu(x, approximate="tanh")
def _silu(x):
    return torch.nn.functional.silu(x)
def _sigmoid(x):
    return torch.sigmoid(x)
def _layernorm(x, axis=-1, eps=1e-5):
    m = x.mean(dim=axis, keepdim=True)
    v = x.var(dim=axis, keepdim=True, unbiased=False)
    return (x - m) / torch.sqrt(v + eps)
def _scatter_add(tgt, idx, src, axis=0):
    return tgt.clone().index_add_(axis, idx, src)
def _segment_sum(src, seg, n):
    out = torch.zeros((n,) + src.shape[1:], dtype=src.dtype)
    return out.index_add_(0, seg, src)
def _pad(x, pw):
    flat = tuple(v for pair in reversed(pw) for v in pair)
    return torch.nn.functional.pad(x, flat)

kernel_name = 'standalone__mha_block_cached__near_ridge'

def setup_inputs():

    _w = (lambda a: (lambda t: t.to(torch.bfloat16) if t.is_floating_point() else t)(torch.as_tensor(a)))
    B, Sq, D = 8, 96, 1024
    H, Sk, Dh = 32, 512, 128
    return {
        "x": _w((lambda *s: torch.randn(*s, dtype=torch.bfloat16) * 0.8)(B, Sq, D)),
        "k_cache": _w((lambda *s: torch.randn(*s, dtype=torch.bfloat16) * 0.8)(B, H, Sk, Dh)),
        "v_cache": _w((lambda *s: torch.randn(*s, dtype=torch.bfloat16) * 0.05)(B, H, Sk, Dh)),
        "wq": _w((lambda *s: torch.randn(*s, dtype=torch.bfloat16) * 0.8)(D, H * Dh) * (D ** -0.5)),
        "wo": _w((lambda *s: torch.randn(*s, dtype=torch.bfloat16) * 0.05)(H * Dh, D) * ((H * Dh) ** -0.5)),
    }

def reference(x, k_cache, v_cache, wq, wo):
    B, Sq, D = x.shape
    H, Dh = 32, 128
    q = (lambda x, *d: x.permute(*d))((x @ wq).reshape(B, Sq, H, Dh), 0, 2, 1, 3)
    scores = torch.einsum("bhqd,bhkd->bhqk", q, k_cache) * (Dh ** -0.5)
    p = _softmax(scores, axis=-1)
    o = torch.einsum("bhqk,bhkd->bhqd", p, v_cache)
    return (lambda x, *d: x.permute(*d))(o, 0, 2, 1, 3).reshape(B, Sq, H * Dh) @ wo
```

```python
class Asm:
    def __init__(self):
        self.lines = []
        self._lbl = 0

    def e(self, s):
        self.lines.append("    " + s)

    def c(self, s):
        self.lines.append("    ; " + s)

    def raw(self, s):
        self.lines.append(s)

    def label(self, name):
        self.lines.append(name + ":")

    def newlabel(self, base):
        self._lbl += 1
        return f"L_{base}_{self._lbl}"

    def nop(self, states):
        while states > 0:
            n = min(states, 16)
            self.e(f"s_nop {n-1}")
            states -= n

    def text(self):
        return "\n".join(self.lines) + "\n"


def v(i, n=1):
    return f"v{i}" if n == 1 else f"v[{i}:{i+n-1}]"


def a(i, n=1):
    return f"a{i}" if n == 1 else f"a[{i}:{i+n-1}]"


def s(i, n=1):
    return f"s{i}" if n == 1 else f"s[{i}:{i+n-1}]"


def kernel_head(A, name):
    A.raw(f".globl {name}")
    A.raw(".p2align 8")
    A.raw(f".type {name},@function")
    A.label(name)


def kernel_desc(name, nvgpr, accum, nsgpr=102):
    return (
        f".amdhsa_kernel {name}\n"
        f"  .amdhsa_next_free_vgpr {nvgpr}\n"
        f"  .amdhsa_next_free_sgpr {nsgpr}\n"
        f"  .amdhsa_accum_offset {accum}\n"
        "  .amdhsa_group_segment_fixed_size 0\n"
        "  .amdhsa_kernarg_size 64\n"
        "  .amdhsa_user_sgpr_count 2\n"
        "  .amdhsa_user_sgpr_kernarg_segment_ptr 1\n"
        "  .amdhsa_system_sgpr_workgroup_id_x 1\n"
        ".end_amdhsa_kernel\n"
    )


HEADER = """; Kernarg layout for this problem (64 bytes, ptrs only, base s[0:1]):
"""


def build_file(kernels):
    out = HEADER
    for k in kernels:
        out += f"; @launch kernel={k['name']} grid=({k['grid']},1,1) block=({k['block']},1,1) lds={k['lds']}\n"
    out += '.amdgcn_target "amdgcn-amd-amdhsa--gfx950"\n.text\n'
    seen = set()
    for k in kernels:
        if k["name"] in seen:
            continue
        seen.add(k["name"])
        out += k["body"]
    out += '.section .rodata,"a"\n'
    seen = set()
    for k in kernels:
        if k["name"] in seen:
            continue
        seen.add(k["name"])
        out += ".p2align 6\n" + kernel_desc(k["name"], k["nvgpr"], k["accum"])
    return out
```

```python
import math, struct
from asmlib import *
from prog import Prog, weave

TS_OFF = 64 << 20
RING0, SLOT = 77824, 28672
CEXP = struct.unpack("<I", struct.pack("<f", math.log2(math.e) / math.sqrt(128.0)))[0]


def gen_k1(name="attn_kernel", ts=False, aux_kv=" nt", aux_x="", aux_wq=" nt", aux_tx="", aux_twq=" nt", aux_o="",
           touch=True, early=((0, 6), (4, 7), (8, 8)), n0=6):
    P = Prog()
    kernel_head(P, name)
    S_W, S_B, S_H, S_XCD, S_IDX = 16, 17, 18, 19, 3
    S_X, S_WQ, S_O = 20, 24, 28
    S_K, S_V, S_TX, S_TW = 32, 36, 40, 44
    S_TS, S_TV = 48, 52
    S_T, S_XO, S_WO, S_MX, S_MW, S_C, S_MSK = 72, 76, 77, 78, 79, 80, 81
    V_L = 1
    XD, WD, XA, WA, WB, KA, VA = 2, 6, 12, 16, 20, 24, 32
    VT = 44
    M0R, M1R, MC, L0, L1, VO = 56, 57, 58, 59, 60, 61
    QF, SB = 64, 96
    OA = 64
    PP = 128
    ACC = 128
    AF, BF = 0, 64
    KF = 0

    V_TS = 62

    def stamp(i):
        if ts:
            P.e(f"s_memrealtime {s(S_TV,2)}")
            P._emit("s_waitcnt lgkmcnt(0)")
            P.ds_q = []
            P.e(f"v_writelane_b32 {v(V_TS)}, {s(S_TV)}, {i}")

    def cstamp(i):
        if ts:
            P.e(f"s_memtime {s(S_TV,2)}")
            P._emit("s_waitcnt lgkmcnt(0)")
            P.ds_q = []
            P.e(f"v_writelane_b32 {v(V_TS)}, {s(S_TV)}, {i}")

    def store_stamps():
        P.e(f"s_add_u32 {s(S_TS)}, s12, {TS_OFF}")
        P.e(f"s_addc_u32 {s(S_TS+1)}, s13, 0")
        P.e(f"s_mov_b32 {s(S_TS+2)}, {1<<20}")
        P.e(f"s_mov_b32 {s(S_TS+3)}, 0x00020000")
        P.e(f"s_lshl_b32 {s(S_T)}, s2, 10")
        P.e(f"s_lshl_b32 {s(S_T+1)}, {s(S_W)}, 8")
        P.e(f"s_add_u32 {s(S_T)}, {s(S_T)}, {s(S_T+1)}")
        P.e(f"v_lshlrev_b32 {v(VT+2)}, 2, {v(V_L)}")
        P.e(f"buffer_store_dword {v(V_TS)}, {v(VT+2)}, {s(S_TS,4)}, {s(S_T)} offen")

    nbar = [0]

    def barrier():
        P.e("s_barrier")
        if ts is True or (ts and nbar[0] in ts):
            stamp(1 + nbar[0])
        nbar[0] += 1

    Lend = P.newlabel("k1end")
    Lload = P.newlabel("k1load")
    P.e("s_cmp_ge_u32 s2, 256")
    P.e(f"s_cbranch_scc1 {Lend}")
    P.e("s_load_dwordx8 s[4:11], s[0:1], 0")
    P.e("s_load_dwordx2 s[12:13], s[0:1], 56")
    P.e(f"v_lshrrev_b32 {v(VT)}, 6, v0")
    P.e(f"v_and_b32 {v(V_L)}, 63, v0")
    if ts:
        P.e(f"v_mov_b32 {v(V_TS)}, 0")
    P.e(f"s_and_b32 {s(S_XCD)}, s2, 7")
    P.e(f"v_readfirstlane_b32 {s(S_W)}, {v(VT)}")
    P.e(f"s_lshr_b32 {s(S_IDX)}, s2, 3")
    P.e(f"s_and_b32 {s(S_B)}, {s(S_IDX)}, 7")
    P.e(f"s_lshr_b32 {s(S_H)}, {s(S_IDX)}, 3")
    P.e(f"s_lshl_b32 {s(S_T)}, {s(S_XCD)}, 2")
    P.e(f"s_add_u32 {s(S_H)}, {s(S_H)}, {s(S_T)}")
    P.e(f"s_cmp_eq_u32 {s(S_W)}, 3")
    P.e(f"s_cbranch_scc1 {Lload}")

    t0, t1, t2, t3 = VT, VT + 1, VT + 2, VT + 3
    L = v(V_L)
    P.e(f"v_lshrrev_b32 {v(t0)}, 3, {L}")
    P.e(f"v_lshlrev_b32 {v(t0)}, 11, {v(t0)}")
    P.e(f"v_lshrrev_b32 {v(t1)}, 4, {L}")
    P.e(f"v_and_b32 {v(t2)}, 7, {L}")
    P.e(f"v_xor_b32 {v(t2)}, {v(t2)}, {v(t1)}")
    P.e(f"v_lshl_add_u32 {v(XD)}, {v(t2)}, 4, {v(t0)}")
    P.e(f"v_xor_b32 {v(XD+1)}, 64, {v(XD)}")
    P.e(f"v_add_u32 {v(XD+2)}, {2*15360}, {v(XD)}")
    P.e(f"v_add_u32 {v(XD+3)}, {3*15360}, {v(XD+1)}")
    P.e(f"v_add_u32 {v(XD+1)}, {15360}, {v(XD+1)}")
    P.e(f"v_and_b32 {v(t2)}, 15, {L}")
    P.e(f"v_lshlrev_b32 {v(t3)}, 2, {v(t1)}")
    P.e(f"v_xor_b32 {v(t2)}, {v(t2)}, {v(t3)}")
    P.e(f"v_lshlrev_b32 {v(t2)}, 4, {v(t2)}")
    P.e(f"v_lshl_add_u32 {v(t2)}, {v(t1)}, 13, {v(t2)}")
    P.e(f"s_lshl_b32 {s(S_T)}, {s(S_W)}, 15")
    P.e(f"v_add_u32 {v(WD)}, {s(S_T)}, {v(t2)}")
    for m in range(1, 6):
        P.e(f"v_add_u32 {v(WD+m)}, {m*98304-(m&1)*3072}, {v(WD)}")
    P.e(f"s_lshl_b32 {s(S_MX)}, {s(S_W)}, 12")
    P.e(f"s_lshl_b32 {s(S_MW)}, {s(S_W)}, 10")
    P.e(f"s_mul_i32 {s(S_T)}, {s(S_B)}, 96")
    P.e(f"s_lshl_b32 {s(S_T+1)}, {s(S_W)}, 5")
    P.e(f"s_add_u32 {s(S_T)}, {s(S_T)}, {s(S_T+1)}")
    P.e(f"s_lshl_b32 {s(S_T)}, {s(S_T)}, 11")
    P.e(f"s_lshl_b32 {s(S_T+1)}, {s(S_H)}, 8")
    P._emit("s_waitcnt lgkmcnt(0)")
    P.e(f"s_add_u32 {s(S_X)}, s4, {s(S_T)}")
    P.e(f"s_addc_u32 {s(S_X+1)}, s5, 0")
    P.e(f"s_mov_b32 {s(S_X+2)}, 65536")
    P.e(f"s_mov_b32 {s(S_X+3)}, 0x00020000")
    P.e(f"s_add_u32 {s(S_WQ)}, s10, {s(S_T+1)}")
    P.e(f"s_addc_u32 {s(S_WQ+1)}, s11, 0")
    P.e(f"s_sub_u32 {s(S_WQ+2)}, {8<<20}, {s(S_T+1)}")
    P.e(f"s_mov_b32 {s(S_WQ+3)}, 0x00020000")
    stamp(0)
    cstamp(60)

    def dma_ops(j):
        sl = RING0 + ((j + 2) % 3) * SLOT
        ops = []

        def xd(n):
            def f():
                if n == 0:
                    P.e(f"s_add_u32 m0, {s(S_MX)}, {sl+16384}")
                    P.e(f"s_mov_b32 {s(S_XO)}, {j*128}")
                P.e(f"buffer_load_dwordx4 {v(XD+n)}, {s(S_X,4)}, {s(S_XO)} offen offset:{n*1024}{aux_x} lds", tag=("D", j))
            return f

        def wd(m):
            def f():
                if m & 1 == 0:
                    P.e(f"s_add_u32 m0, {s(S_MW)}, {sl+(m>>1)*6144}")
                if m == 0:
                    P.e(f"s_mov_b32 {s(S_WO)}, {j*524288}")
                ins = f"buffer_load_dwordx4 {v(WD+m)}, {s(S_WQ,4)}, {s(S_WO)} offen offset:{(m&1)*3072}{aux_wq} lds"
                if m < 5:
                    P.e(ins, tag=("D", j))
                else:
                    lb = P.newlabel("w0")
                    P.e(f"s_cmp_lg_u32 {s(S_W)}, 0")
                    P.e(f"s_cbranch_scc1 {lb}")
                    P.skip = True
                    P.e(ins, tag=("X", j))
                    P.skip = False
                    P.label(lb)
            return f
        for m in range(6):
            ops.append(wd(m))
        for n in range(4):
            ops.append(xd(n))
        return ops

    def wait_stage(j):
        q = P.vm_q
        idx = max(i for i, x in enumerate(q) if x in (("D", j), ("X", j)))
        later = q[idx + 1:]
        n_all = len(later)
        n_com = len([x for x in later if x[0] != "X"])
        if n_all != n_com:
            lb = P.newlabel("wq")
            P.e(f"s_cmp_eq_u32 {s(S_W)}, 0")
            P.e(f"s_cbranch_scc1 {lb}")
            P.skip = True
            P._emit(f"s_waitcnt vmcnt({n_com})")
            P.skip = False
            P.label(lb)
        P._emit(f"s_waitcnt vmcnt({n_all})")
        del q[: idx + 1]

    for j in range(3):
        for f in dma_ops(j):
            f()
    P.e(f"v_and_b32 {v(t0)}, 31, {L}")
    P.e(f"v_lshrrev_b32 {v(t1)}, 5, {L}")
    P.e(f"v_bfe_u32 {v(t2)}, {L}, 1, 3")
    P.e(f"v_xor_b32 {v(t2)}, {v(t2)}, {v(t1)}")
    P.e(f"v_lshlrev_b32 {v(t2)}, 4, {v(t2)}")
    P.e(f"v_lshl_add_u32 {v(t2)}, {v(t0)}, 7, {v(t2)}")
    P.e(f"s_add_u32 {s(S_T)}, {s(S_MX)}, {RING0+16384}")
    P.e(f"v_add_u32 {v(XA)}, {s(S_T)}, {v(t2)}")
    for q in range(1, 4):
        P.e(f"v_xor_b32 {v(XA+q)}, {32*q}, {v(XA)}")
    P.e(f"v_and_b32 {v(t2)}, 15, {L}")
    P.e(f"v_xor_b32 {v(t2)}, {v(t2)}, {v(t1)}")
    P.e(f"v_lshlrev_b32 {v(t2)}, 4, {v(t2)}")
    P.e(f"v_lshl_add_u32 {v(KA)}, {v(t0)}, 8, {v(t2)}")
    for q in range(1, 8):
        P.e(f"v_xor_b32 {v(KA+q)}, {32*q}, {v(KA)}")
    P.e(f"v_bfe_u32 {v(t0)}, {L}, 2, 2")
    P.e(f"v_mul_u32_u24 {v(t2)}, 320, {v(t0)}")
    P.e(f"v_bfe_u32 {v(t3)}, {L}, 4, 1")
    P.e(f"v_lshl_add_u32 {v(t2)}, {v(t3)}, 5, {v(t2)}")
    P.e(f"v_and_b32 {v(t3)}, 1, {L}")
    P.e(f"v_lshl_add_u32 {v(t2)}, {v(t3)}, 4, {v(t2)}")
    P.e(f"v_bfe_u32 {v(t3)}, {L}, 1, 1")
    P.e(f"v_lshl_add_u32 {v(t2)}, {v(t3)}, 3, {v(t2)}")
    P.e(f"v_lshl_add_u32 {v(WA)}, {v(t1)}, 11, {v(t2)}")
    P.e(f"v_add_u32 {v(WA)}, {RING0}, {v(WA)}")
    P.e(f"v_lshl_add_u32 {v(VA)}, {v(t1)}, 10, {v(t2)}")
    for T in range(1, 4):
        P.e(f"v_xor_b32 {v(WA+T)}, {64*T}, {v(WA)}")
        P.e(f"v_xor_b32 {v(VA+T)}, {64*T}, {v(VA)}")
    for T in range(4):
        P.e(f"v_add_u32 {v(WB+T)}, {2*SLOT}, {v(WA+T)}")
        P.e(f"v_add_u32 {v(VA+4+T)}, 65536, {v(VA+T)}")
        P.e(f"v_add_u32 {v(VA+8+T)}, 131072, {v(VA+T)}")
    P.e(f"s_mul_i32 {s(S_T)}, {s(S_B)}, 6")
    P.e(f"s_lshl_b32 {s(S_T+1)}, {s(S_W)}, 1")
    P.e(f"s_add_u32 {s(S_T)}, {s(S_T)}, {s(S_T+1)}")
    for k in range(2):
        P.e(f"s_mul_i32 {s(S_T+1)}, {s(S_T)}, 43")
        P.e(f"s_lshr_b32 {s(S_T+1)}, {s(S_T+1)}, 7")
        P.e(f"s_mul_i32 {s(S_T+2)}, {s(S_T+1)}, 3")
        P.e(f"s_sub_u32 {s(S_T+2)}, {s(S_T)}, {s(S_T+2)}")
        P.e(f"s_mul_i32 {s(S_T+1)}, {s(S_T+1)}, {128*3072}")
        P.e(f"s_lshl_b32 {s(S_T+2)}, {s(S_T+2)}, 10")
        P.e(f"s_add_u32 {s(S_T+1)}, {s(S_T+1)}, {s(S_T+2)}")
        P.e(f"v_mov_b32 {v(t2+k)}, {s(S_T+1)}")
        if k == 0:
            P.e(f"s_add_u32 {s(S_T)}, {s(S_T)}, 1")
    P.e(f"v_and_b32 {v(t0)}, 16, {L}")
    P.e(f"v_cmp_ne_u32 vcc, 0, {v(t0)}")
    P.e(f"v_and_b32 {v(t0)}, 15, {L}")
    P.e(f"v_lshl_add_u32 {v(t0)}, {v(t1)}, 4, {v(t0)}")
    P.e(f"v_cndmask_b32 {v(t2)}, {v(t2)}, {v(t3)}, vcc")
    P.e(f"v_lshl_add_u32 {v(VO)}, {v(t0)}, 4, {v(t2)}")
    P.e(f"s_mul_i32 {s(S_T)}, {s(S_H)}, {4*3072}")
    P.e(f"s_add_u32 {s(S_O)}, s12, {s(S_T)}")
    P.e(f"s_addc_u32 {s(S_O+1)}, s13, 0")
    P.e(f"s_sub_u32 {s(S_O+2)}, {768*4096*2}, {s(S_T)}")
    P.e(f"s_mov_b32 {s(S_O+3)}, 0x00020000")
    P.e(f"s_mov_b32 {s(S_C)}, {CEXP}")
    P.e(f"s_mov_b32 {s(S_MSK)}, 0xffff0000")
    P.e(f"v_mov_b32 {v(M0R)}, 0xff800000")
    P.e(f"v_mov_b32 {v(M1R)}, 0xff800000")
    P.e(f"v_mov_b32 {v(L0)}, 0")
    P.e(f"v_mov_b32 {v(L1)}, 0")

    def qreads(i, st):
        sg = (i + 2) % 3
        bf = st & 1
        ops = [lambda: P.e(f"ds_read_b128 {a(BF+bf*4,4)}, {v(XA+st)} offset:{sg*SLOT}", tag=("B", i, st))]
        for T in range(4):
            for sec in range(2):
                base = (WA if sg < 2 else WB) + T
                off = (sg * SLOT if sg < 2 else 0) + st * 4096 + sec * 1024
                ops.append(lambda T=T, sec=sec, base=base, off=off: P.e(
                    f"ds_read_b64_tr_b16 {a(AF+bf*16+T*4+sec*2,2)}, {v(base)} offset:{off}", tag=("A", i, st, T)))
        return ops

    def qmfma(i, st, T):
        bf = st & 1
        c = "0" if (i == 0 and st == 0) else v(ACC + T * 16, 16)
        return lambda: P.e(f"v_mfma_f32_32x32x16_bf16 {v(ACC+T*16,16)}, {a(AF+bf*16+T*4,4)}, {a(BF+bf*4,4)}, {c}",
                           nds=[("B", i, st), ("A", i, st, T)])

    def kreads(kc):
        bf = (kc + 1) & 1
        return [lambda q=q: P.e(f"ds_read_b128 {a(KF+bf*32+q*4,4)}, {v(KA+q)} offset:{(kc&7)*8192}", tag=("K", kc, q))
                for q in range(8)]

    wait_stage(0)
    barrier()
    for f in qreads(0, 0):
        f()
    pend = []
    for i in range(16):
        for st in range(3):
            fill = qreads(i, st + 1)
            mf = [qmfma(i, st, T) for T in range(4)]
            for T in range(4):
                mf[T]()
                for _ in range(3):
                    if fill:
                        fill.pop(0)()
                if pend:
                    pend.pop(0)()
        while pend:
            pend.pop(0)()
        P.drain_ds()
        qmfma(i, 3, 0)()
        if i < 15:
            wait_stage(i + 1)
        barrier()
        fill = qreads(i + 1, 0) if i < 15 else kreads(0)
        pend = dma_ops(i + 3) if i + 3 < 16 else []
        for T in range(1, 4):
            for _ in range(3):
                if fill:
                    fill.pop(0)()
            qmfma(i, 3, T)()
            if pend:
                pend.pop(0)()
        while fill:
            fill.pop(0)()

    def qcvt(T):
        return [lambda r=r: P.e(f"v_cvt_pk_bf16_f32 {v(QF+T*8+r)}, {v(ACC+T*16+2*r)}, {v(ACC+T*16+2*r+1)}") for r in range(8)]

    def kmfma(kc, q):
        bf = kc & 1
        c = "0" if q == 0 else v(SB + bf * 16, 16)
        return lambda: P.e(f"v_mfma_f32_32x32x16_bf16 {v(SB+bf*16,16)}, {a(KF+(1-bf)*32+q*4,4)}, {v(QF+q*4,4)}, {c}", nds=[("K", kc, q)])

    def kvalu(kc):
        bf = kc & 1
        ops = []
        for r in range(8):
            m = M0R + (r & 1)
            ops.append(lambda r=r, m=m: P.e(f"v_max3_f32 {v(m)}, {v(m)}, {v(SB+bf*16+2*r)}, {v(SB+bf*16+2*r+1)}"))
            ops.append(lambda r=r: P.e(f"v_cvt_pk_bf16_f32 {v(PP+kc*8+r)}, {v(SB+bf*16+2*r)}, {v(SB+bf*16+2*r+1)}"))
        return ops

    for f in qcvt(0) + qcvt(1):
        f()
    for kc in range(16):
        mf = [kmfma(kc, q) for q in range(8)]
        nxt = kreads(kc + 1) if kc < 15 else []
        if kc + 1 == 8:
            nxt = [lambda q=q: P.e(f"v_add_u32 {v(KA+q)}, 65536, {v(KA+q)}") for q in range(8)] + nxt
        if kc == 0:
            c2, c3 = qcvt(2), qcvt(3)
            fill = c2[:4] + c2[4:] + c3[:4] + c3[4:] + nxt
            weave(P, mf, fill, [4, 4, 4, 4, 2, 2, 2, 2])
            continue
        fill = nxt + kvalu(kc - 1)
        if kc & 1 and kc < 15:
            P.drain_ds()
            mf[0]()
            barrier()
            mf = [lambda: None] + mf[1:]
        n = len(fill)
        weave(P, mf, fill, [3, 3, 2, 4, 3, 3, 3, 3] if n == 24 else ([4, 4, 4, 4, 4, 4, 4, 4] if n > 24 else [0, 0, 0, 4, 3, 3, 3, 3]))
    for f in kvalu(15):
        f()
    stamp(40)
    P.e(f"v_max_f32 {v(M0R)}, {v(M0R)}, {v(M1R)}")
    P.e(f"v_mov_b32 {v(M1R)}, {v(M0R)}")
    P.e(f"v_permlane32_swap_b32 {v(M0R)}, {v(M1R)}")
    P.e(f"v_max_f32 {v(M0R)}, {v(M0R)}, {v(M1R)}")
    P.e(f"v_cvt_pk_bf16_f32 {v(M0R)}, {v(M0R)}, {v(M0R)}")
    P.e(f"v_and_b32 {v(M0R)}, {s(S_MSK)}, {v(M0R)}")
    P.e(f"v_mul_f32 {v(MC)}, {s(S_C)}, {v(M0R)}")

    def exps(t):
        ops = []
        for r in range(8):
            pr = PP + t * 8 + r
            ta, tb = VT + (r & 1) * 2, VT + (r & 1) * 2 + 1
            ops += [
                lambda pr=pr, ta=ta: P.e(f"v_lshlrev_b32 {v(ta)}, 16, {v(pr)}"),
                lambda pr=pr, tb=tb: P.e(f"v_and_b32 {v(tb)}, {s(S_MSK)}, {v(pr)}"),
                lambda ta=ta: P.e(f"v_fma_f32 {v(ta)}, {v(ta)}, {s(S_C)}, -{v(MC)}"),
                lambda tb=tb: P.e(f"v_fma_f32 {v(tb)}, {v(tb)}, {s(S_C)}, -{v(MC)}"),
                lambda ta=ta: P.e(f"v_exp_f32 {v(ta)}, {v(ta)}"),
                lambda tb=tb: P.e(f"v_exp_f32 {v(tb)}, {v(tb)}"),
                lambda ta=ta: P.e(f"v_add_f32 {v(L0)}, {v(L0)}, {v(ta)}"),
                lambda tb=tb: P.e(f"v_add_f32 {v(L1)}, {v(L1)}, {v(tb)}"),
                lambda pr=pr, ta=ta, tb=tb: P.e(f"v_cvt_pk_bf16_f32 {v(pr)}, {v(ta)}, {v(tb)}"),
            ]
        return ops

    def vreads(t):
        bf = t & 1
        rg = 16 + t if t < 4 else t - 4
        st_, off = rg >> 3, (rg & 7) * 8192
        ops = []
        for u in range(2):
            for T in range(4):
                for sec in range(2):
                    ops.append(lambda u=u, T=T, sec=sec: P.e(
                        f"ds_read_b64_tr_b16 {a(KF+bf*32+(u*4+T)*4+sec*2,2)}, {v(VA+st_*4+T)} offset:{off+u*4096+sec*2048}",
                        tag=("V", t, u, T)))
        return ops

    def vmfma(t, u, T):
        bf = t & 1
        c = "0" if (t == 0 and u == 0) else v(OA + T * 16, 16)
        return lambda: P.e(f"v_mfma_f32_32x32x16_bf16 {v(OA+T*16,16)}, {a(KF+bf*32+(u*4+T)*4,4)}, {v(PP+t*8+u*4,4)}, {c}",
                           nds=[("V", t, u, T)])

    def lfin():
        return [
            lambda: P.e(f"v_add_f32 {v(L0)}, {v(L0)}, {v(L1)}"),
            lambda: P.e(f"v_mov_b32 {v(L1)}, {v(L0)}"),
            lambda: P.e(f"v_permlane32_swap_b32 {v(L0)}, {v(L1)}"),
            lambda: P.e(f"v_add_f32 {v(L0)}, {v(L0)}, {v(L1)}"),
            lambda: P.e(f"v_rcp_f32 {v(L0)}, {v(L0)}"),
        ]

    for f in exps(0) + exps(1):
        f()
    barrier()
    for f in vreads(0):
        f()
    for t in range(16):
        mf = [vmfma(t, u, T) for u in range(2) for T in range(4)]
        nxt = vreads(t + 1) if t < 15 else []
        ex = (exps(2 * t + 2) + exps(2 * t + 3)) if t < 7 else (lfin() if t == 7 else [])
        if t & 1 and t < 15:
            weave(P, mf[:6], ex, len(ex) // 6 + 1)
            barrier()
            weave(P, [lambda: None] + mf[6:], nxt, [6, 5, 5])
        else:
            per = [2 + len(ex) // 8 + 1] * 8
            fill = []
            e = list(ex)
            rd = list(nxt)
            k = len(e) // 8 + 1
            for g in range(8):
                mf[g]()
                for _ in range(3):
                    if rd:
                        rd.pop(0)()
                for _ in range(k):
                    if e:
                        e.pop(0)()
            assert not rd and not e
    for T in range(4):
        for sub in range(2):
            b = OA + T * 16 + sub * 8
            for r in range(8):
                P.e(f"v_mul_f32 {v(b+r)}, {v(b+r)}, {v(L0)}")
            for r in range(4):
                P.e(f"v_cvt_pk_bf16_f32 {v(b+r)}, {v(b+2*r)}, {v(b+2*r+1)}")
            if sub == 0:
                P.e(f"s_mov_b32 {s(S_T)}, {T*3072}")
            P.e(f"buffer_store_dwordx4 {v(b,4)}, {v(VO)}, {s(S_O,4)}, {s(S_T)} offen offset:{sub*512}{aux_o}", tag="st")
    if ts:
        stamp(41)
        P.vm_cap(0)
        stamp(42)
        cstamp(61)
        store_stamps()
    P.e("s_endpgm")

    P.label(Lload)
    P.reset_state()
    nbar[0] = 0
    KD, VD, TXV, TWV, TD = 2, 6, 7, 8, 10
    P.e(f"v_lshrrev_b32 {v(t1)}, 4, {L}")
    P.e(f"v_and_b32 {v(t2)}, 15, {L}")
    P.e(f"v_xor_b32 {v(t3)}, {v(t2)}, {v(t1)}")
    P.e(f"v_lshlrev_b32 {v(t3)}, 4, {v(t3)}")
    P.e(f"v_lshl_add_u32 {v(KD)}, {v(t1)}, 8, {v(t3)}")
    for n in range(1, 4):
        P.e(f"v_xor_b32 {v(KD+n)}, {64*n}, {v(KD)}")
    P.e(f"v_lshlrev_b32 {v(t3)}, 2, {v(t1)}")
    P.e(f"v_xor_b32 {v(t3)}, {v(t2)}, {v(t3)}")
    P.e(f"v_lshlrev_b32 {v(t3)}, 4, {v(t3)}")
    P.e(f"v_lshl_add_u32 {v(VD)}, {v(t1)}, 8, {v(t3)}")
    P.e(f"s_mul_i32 {s(S_T)}, {s(S_IDX)}, {24*2048}")
    P.e(f"v_and_b32 {v(t0)}, 31, {L}")
    P.e(f"v_lshlrev_b32 {v(t0)}, 11, {v(t0)}")
    P.e(f"v_lshrrev_b32 {v(t2)}, 5, {L}")
    P.e(f"v_lshl_add_u32 {v(t0)}, {v(t2)}, 7, {v(t0)}")
    P.e(f"v_add_u32 {v(TXV)}, {s(S_T)}, {v(t0)}")
    P.e(f"s_lshl_b32 {s(S_T)}, {s(S_IDX)}, 14")
    P.e(f"v_lshlrev_b32 {v(t0)}, 19, {v(t1)}")
    P.e(f"v_bfe_u32 {v(t2)}, {L}, 3, 1")
    P.e(f"v_lshl_add_u32 {v(t0)}, {v(t2)}, 13, {v(t0)}")
    P.e(f"v_and_b32 {v(t2)}, 7, {L}")
    P.e(f"v_lshl_add_u32 {v(t0)}, {v(t2)}, 7, {v(t0)}")
    P.e(f"v_add_u32 {v(TWV)}, {s(S_T)}, {v(t0)}")
    P.e(f"s_lshl_b32 {s(S_T)}, {s(S_B)}, 5")
    P.e(f"s_add_u32 {s(S_T)}, {s(S_T)}, {s(S_H)}")
    P.e(f"s_lshl_b32 {s(S_T)}, {s(S_T)}, 17")
    P.e(f"s_lshl_b32 {s(S_T+1)}, {s(S_XCD)}, 10")
    P._emit("s_waitcnt lgkmcnt(0)")
    P.e(f"s_mov_b32 {s(S_TX)}, s4")
    P.e(f"s_mov_b32 {s(S_TX+1)}, s5")
    P.e(f"s_mov_b32 {s(S_TX+2)}, {768*2048}")
    P.e(f"s_mov_b32 {s(S_TX+3)}, 0x00020000")
    P.e(f"s_add_u32 {s(S_TW)}, s10, {s(S_T+1)}")
    P.e(f"s_addc_u32 {s(S_TW+1)}, s11, 0")
    P.e(f"s_sub_u32 {s(S_TW+2)}, {8<<20}, {s(S_T+1)}")
    P.e(f"s_mov_b32 {s(S_TW+3)}, 0x00020000")
    P.e(f"s_add_u32 {s(S_K)}, s6, {s(S_T)}")
    P.e(f"s_addc_u32 {s(S_K+1)}, s7, 0")
    P.e(f"s_mov_b32 {s(S_K+2)}, 131072")
    P.e(f"s_mov_b32 {s(S_K+3)}, 0x00020000")
    P.e(f"s_add_u32 {s(S_V)}, s8, {s(S_T)}")
    P.e(f"s_addc_u32 {s(S_V+1)}, s9, 0")
    P.e(f"s_mov_b32 {s(S_V+2)}, 131072")
    P.e(f"s_mov_b32 {s(S_V+3)}, 0x00020000")
    if touch:
        d = TD
        for n in range(4):
            P.e(f"s_mov_b32 {s(S_T)}, {n<<21}")
            P.e(f"buffer_load_dword {v(d)}, {v(TWV)}, {s(S_TW,4)}, {s(S_T)} offen{aux_twq}", tag="t")
            d += 1
            P.e("s_mov_b32 exec_lo, 0x00ffffff")
            P.e("s_mov_b32 exec_hi, 0x00ffffff")
            for k in range(2):
                P.e(f"buffer_load_dword {v(d)}, {v(TXV)}, {s(S_TX,4)}, 0 offen offset:{(2*n+k)*256}{aux_tx}", tag="t")
                d += 1
            P.e("s_mov_b64 exec, -1")

    issued = [0]

    def chunk():
        c = issued[0]
        issued[0] += 1
        P.vm_cap(55)
        if c < 16:
            rg, srd, go = c, S_K, c * 8192
        else:
            t = c - 16
            rg, srd, go = (16 + t if t < 4 else t - 4), S_V, t * 8192
        for hf in range(2):
            P.e(f"s_mov_b32 m0, {rg*8192+hf*4096}")
            P.e(f"s_mov_b32 {s(S_T)}, {go+hf*4096}")
            for n in range(4):
                vo = KD + n if c < 16 else VD
                P.e(f"buffer_load_dwordx4 {v(vo)}, {s(srd,4)}, {s(S_T)} offen offset:{n*1024}{aux_kv} lds", tag=("C", c))

    free = [9]

    def fill_free():
        while issued[0] < free[0] and len(P.vm_q) <= 55:
            chunk()

    def land(c):
        for cc in range(c + 1):
            assert issued[0] > cc
            if ("C", cc) in P.vm_q:
                P.need_vm([("C", cc)])
                fill_free()

    for c in range(n0):
        chunk()
    stamp(0)
    early = dict(early)
    for i in range(16):
        if i in early:
            while issued[0] <= early[i]:
                chunk()
        barrier()
        if i == 14:
            free[0] = 13
            while issued[0] < free[0]:
                chunk()
        if i == 15:
            free[0] = 16
            while issued[0] < free[0]:
                chunk()
    for m in range(8):
        land(2 * m + 1)
        barrier()
        free[0] = min(32, 20 + 2 * m)
        fill_free()
    for m in range(8):
        land(16 + 2 * m + 1)
        barrier()
        assert issued[0] >= min(32, 16 + 2 * m + 4), (m, issued)
    assert issued[0] == 32
    if ts:
        store_stamps()
    P.label(Lend)
    P.e("s_endpgm")
    return dict(name=name, grid=256, block=256, lds=163840, body=P.text(), nvgpr=256 + 72, accum=256)


if __name__ == "__main__":
    import sys
    open(sys.argv[1], "w").write(build_file([gen_k1(ts=True)]))
```

```python
from asmlib import *

TS_OFF = 64 << 20


def emit_ts(A, slot, sws, stmp, vtmp, wgreg="s2", base=0):
    A.e(f"s_memrealtime {s(stmp,2)}")
    A.e("s_waitcnt lgkmcnt(0)")
    A.e(f"v_mov_b32 {v(vtmp)}, {s(stmp)}")
    A.e(f"v_mov_b32 {v(vtmp+1)}, {s(stmp+1)}")
    A.e(f"v_mov_b32 {v(vtmp+2)}, 0")
    A.e(f"s_lshl_b32 {s(stmp)}, {wgreg}, 7")
    A.e(f"buffer_store_dwordx2 {v(vtmp,2)}, {v(vtmp+2)}, {s(sws,4)}, {s(stmp)} offen offset:{base+slot*8}")


def gen_k2(name="oproj_kernel", D=8, compute=True, ts=False, aux_wo="", aux_o=""):
    A = Asm()
    kernel_head(A, name)
    NSTEP = 32
    V_LANE, V_DMA, V_O, V_TR = 1, 2, 6, 8
    V_T = 12
    V_A, V_ACC, V_OF = 16, 48, 96
    S_WO, S_OS, S_OUT, S_TS = 12, 16, 20, 32
    S_W, S_LB, S_SW, S_SO, S_CNT = 24, 25, 26, 27, 28
    S_RT, S_CT, S_T = 29, 30, 36
    Lend = A.newlabel("k2end")
    A.e("s_cmp_ge_u32 s2, 256")
    A.e(f"s_cbranch_scc1 {Lend}")
    A.e("s_load_dwordx4 s[4:7], s[0:1], 32")
    A.e("s_load_dwordx2 s[8:9], s[0:1], 56")
    A.e(f"v_and_b32 {v(V_LANE)}, 63, v0")
    A.e(f"v_lshrrev_b32 {v(V_T)}, 6, v0")
    A.e("s_and_b32 s3, s2, 7")
    A.e(f"s_lshr_b32 {s(S_T)}, s2, 3")
    A.e(f"v_readfirstlane_b32 {s(S_W)}, {v(V_T)}")
    A.e(f"s_and_b32 {s(S_RT)}, s3, 1")
    A.e(f"s_lshl_b32 {s(S_RT)}, {s(S_RT)}, 3")
    A.e(f"s_and_b32 {s(S_T+1)}, {s(S_T)}, 7")
    A.e(f"s_add_u32 {s(S_RT)}, {s(S_RT)}, {s(S_T+1)}")
    A.e(f"s_lshr_b32 {s(S_CT)}, s3, 1")
    A.e(f"s_lshl_b32 {s(S_CT)}, {s(S_CT)}, 2")
    A.e(f"s_lshr_b32 {s(S_T+1)}, {s(S_T)}, 3")
    A.e(f"s_add_u32 {s(S_CT)}, {s(S_CT)}, {s(S_T+1)}")
    t0, t1, t2 = V_T, V_T + 1, V_T + 2
    A.e(f"v_lshrrev_b32 {v(t0)}, 3, {v(V_LANE)}")
    A.e(f"v_lshlrev_b32 {v(t0)}, 11, {v(t0)}")
    A.e(f"v_and_b32 {v(t1)}, 1, {v(V_LANE)}")
    A.e(f"v_lshl_add_u32 {v(t0)}, {v(t1)}, 4, {v(t0)}")
    A.e(f"v_bfe_u32 {v(t1)}, {v(V_LANE)}, 1, 2")
    A.e(f"v_bfe_u32 {v(t2)}, {v(V_LANE)}, 4, 1")
    A.e(f"v_xor_b32 {v(t1)}, {v(t1)}, {v(t2)}")
    for blk in range(4):
        if blk & 1:
            A.e(f"v_xor_b32 {v(t2)}, 2, {v(t1)}")
            A.e(f"v_lshl_add_u32 {v(V_DMA+blk)}, {v(t2)}, 5, {v(t0)}")
        else:
            A.e(f"v_lshl_add_u32 {v(V_DMA+blk)}, {v(t1)}, 5, {v(t0)}")
        if blk:
            A.e(f"v_add_u32 {v(V_DMA+blk)}, {blk*(16384-1024)}, {v(V_DMA+blk)}")
    A.e(f"v_lshlrev_b32 {v(V_O)}, 4, {v(V_LANE)}")
    A.e(f"s_mul_i32 {s(S_LB)}, {s(S_W)}, {D*4096}")
    A.e(f"v_lshrrev_b32 {v(t0)}, 4, {v(V_LANE)}")
    A.e(f"v_bfe_u32 {v(t1)}, {v(V_LANE)}, 2, 2")
    A.e(f"v_lshl_add_u32 {v(t2)}, {v(t0)}, 3, {v(t1)}")
    A.e(f"v_lshlrev_b32 {v(t2)}, 7, {v(t2)}")
    A.e(f"v_and_b32 {v(t0)}, 1, {v(t0)}")
    A.e(f"v_lshlrev_b32 {v(t0)}, 1, {v(t0)}")
    A.e(f"v_bfe_u32 {v(t1)}, {v(V_LANE)}, 3, 1")
    A.e(f"v_or_b32 {v(t0)}, {v(t0)}, {v(t1)}")
    A.e(f"v_and_b32 {v(t1)}, 3, {v(V_LANE)}")
    A.e(f"v_lshl_add_u32 {v(t2)}, {v(t1)}, 3, {v(t2)}")
    A.e(f"v_add_u32 {v(t2)}, {s(S_LB)}, {v(t2)}")
    for c in range(4):
        A.e(f"v_xor_b32 {v(t1)}, {c}, {v(t0)}")
        A.e(f"v_lshl_add_u32 {v(V_TR+c)}, {v(t1)}, 5, {v(t2)}")
    A.e("s_waitcnt lgkmcnt(0)")
    A.e(f"s_lshl_b32 {s(S_T)}, {s(S_W)}, 21")
    A.e(f"s_lshl_b32 {s(S_T+1)}, {s(S_CT)}, 7")
    A.e(f"s_add_u32 {s(S_T)}, {s(S_T)}, {s(S_T+1)}")
    A.e(f"s_add_u32 {s(S_WO)}, s4, {s(S_T)}")
    A.e(f"s_addc_u32 {s(S_WO+1)}, s5, 0")
    A.e(f"s_sub_u32 {s(S_WO+2)}, {4096*1024*2}, {s(S_T)}")
    A.e(f"s_mov_b32 {s(S_WO+3)}, 0x00020000")
    A.e(f"s_lshl_b32 {s(S_T)}, {s(S_RT)}, 7")
    A.e(f"s_lshl_b32 {s(S_T+1)}, {s(S_W)}, 5")
    A.e(f"s_add_u32 {s(S_T)}, {s(S_T)}, {s(S_T+1)}")
    A.e(f"s_mul_i32 {s(S_T)}, {s(S_T)}, 3072")
    A.e(f"s_add_u32 {s(S_OS)}, s8, {s(S_T)}")
    A.e(f"s_addc_u32 {s(S_OS+1)}, s9, 0")
    A.e(f"s_mov_b32 {s(S_OS+2)}, {32*3072}")
    A.e(f"s_mov_b32 {s(S_OS+3)}, 0x00020000")
    A.e(f"s_mov_b32 {s(S_OUT)}, s6")
    A.e(f"s_mov_b32 {s(S_OUT+1)}, s7")
    A.e(f"s_mov_b32 {s(S_OUT+2)}, {768*1024*2}")
    A.e(f"s_mov_b32 {s(S_OUT+3)}, 0x00020000")
    if ts:
        A.e(f"s_add_u32 {s(S_TS)}, s8, {TS_OFF}")
        A.e(f"s_addc_u32 {s(S_TS+1)}, s9, 0")
        A.e(f"s_mov_b32 {s(S_TS+2)}, {1<<20}")
        A.e(f"s_mov_b32 {s(S_TS+3)}, 0x00020000")
        emit_ts(A, 0, S_TS, S_T, V_T, base=64)
    A.e(f"s_mov_b32 {s(S_SW)}, 0")
    A.e(f"s_mov_b32 {s(S_SO)}, 0")

    nv = [0]

    def dma(slot):
        A.e(f"s_add_u32 m0, {s(S_LB)}, {slot*4096}")
        A.e("s_nop 0")
        for blk in range(4):
            A.e(f"buffer_load_dwordx4 {v(V_DMA+blk)}, {s(S_WO,4)}, {s(S_SW)} offen offset:{blk*1024}{aux_wo} lds")
        A.e(f"s_add_u32 {s(S_SW)}, {s(S_SW)}, 65536")

    def oload(slot):
        for u in range(3):
            A.e(f"buffer_load_dwordx4 {v(V_OF+slot*12+u*4,4)}, {v(V_O)}, {s(S_OS,4)}, {s(S_SO)} offen offset:{u*1024}{aux_o}")
        A.e(f"s_add_u32 {s(S_SO)}, {s(S_SO)}, 3072")

    def trreads(slot, buf):
        for c in range(4):
            for sec in range(2):
                A.e(f"ds_read_b64_tr_b16 {v(V_A+buf*16+c*4+sec*2,2)}, {v(V_TR+c)} offset:{slot*4096+sec*512}")

    def mfmas(slot, buf, first):
        for u in range(3):
            for c in range(4):
                acc = V_ACC + (u * 4 + c) * 4
                csrc = "0" if first else v(acc, 4)
                A.e(f"v_mfma_f32_16x16x32_bf16 {v(acc,4)}, {v(V_A+buf*16+c*4,4)}, {v(V_OF+slot*12+u*4,4)}, {csrc}")

    for j in range(D):
        dma(j)
        oload(j)
    extra = 1 if ts else 0
    A.e(f"s_waitcnt vmcnt({7*(D-1)})")
    if compute:
        trreads(0, 0)
    for r in range(48):
        A.e(f"v_mov_b32 {v(V_ACC+r)}, 0")

    def step(j, jj, refill, last):
        slot = j % D
        buf = j & 1
        if not last:
            A.e(f"s_waitcnt vmcnt({7*jj})")
            if compute:
                trreads((j + 1) % D, buf ^ 1)
                A.e("s_waitcnt lgkmcnt(8)")
        else:
            if compute:
                A.e("s_waitcnt lgkmcnt(0)")
        if refill:
            dma(slot)
        if compute:
            mfmas(slot, buf, False)
        if refill:
            oload(slot)

    U = D if D % 2 == 0 else 2 * D
    nref = NSTEP - D
    nloop = nref // U
    rem = nref - nloop * U
    if nloop > 0:
        Lloop = A.newlabel("k2loop")
        A.e(f"s_mov_b32 {s(S_CNT)}, {nloop}")
        A.label(Lloop)
        for j in range(U):
            step(j, D - 2, True, False)
        A.e(f"s_sub_u32 {s(S_CNT)}, {s(S_CNT)}, 1")
        A.e(f"s_cmp_lg_u32 {s(S_CNT)}, 0")
        A.e(f"s_cbranch_scc1 {Lloop}")
    j0 = nloop * U
    for j in range(j0, NSTEP):
        refill = j < nref
        issued = min(j + D, NSTEP)
        step(j, issued - (j + 2), refill, j == NSTEP - 1)
    A.nop(16)
    A.e("s_barrier")
    A.e(f"s_mul_i32 {s(S_T)}, {s(S_W)}, 12288")
    A.e(f"v_add_u32 {v(t0)}, {s(S_T)}, {v(V_O)}")
    for t in range(12):
        A.e(f"ds_write_b128 {v(t0)}, {v(V_ACC+t*4,4)} offset:{t*1024}")
    A.e("s_waitcnt lgkmcnt(0)")
    A.e("s_barrier")
    A.e(f"s_lshl_b32 {s(S_T)}, {s(S_W)}, 10")
    A.e(f"v_add_u32 {v(t0)}, {s(S_T)}, {v(V_O)}")
    R = V_OF
    for u in range(3):
        for p in range(4):
            A.e(f"ds_read_b128 {v(R+(u*4+p)*4,4)}, {v(t0)} offset:{p*12288+u*4096}")
    A.e(f"v_and_b32 {v(t1)}, 15, {v(V_LANE)}")
    A.e(f"v_lshlrev_b32 {v(t1)}, 11, {v(t1)}")
    A.e(f"v_lshrrev_b32 {v(t2)}, 4, {v(V_LANE)}")
    A.e(f"v_lshl_add_u32 {v(t1)}, {v(t2)}, 3, {v(t1)}")
    A.e(f"s_mul_i32 {s(S_T)}, {s(S_RT)}, {48*2048}")
    A.e(f"s_lshl_b32 {s(S_T+1)}, {s(S_CT)}, 7")
    A.e(f"s_add_u32 {s(S_T)}, {s(S_T)}, {s(S_T+1)}")
    A.e(f"s_lshl_b32 {s(S_T+1)}, {s(S_W)}, 5")
    A.e(f"s_add_u32 {s(S_T)}, {s(S_T)}, {s(S_T+1)}")
    for u in range(3):
        A.e(f"s_waitcnt lgkmcnt({8-4*u})")
        b = R + u * 16
        for r in range(4):
            A.e(f"v_add_f32 {v(b+r)}, {v(b+r)}, {v(b+4+r)}")
            A.e(f"v_add_f32 {v(b+8+r)}, {v(b+8+r)}, {v(b+12+r)}")
        for r in range(4):
            A.e(f"v_add_f32 {v(b+r)}, {v(b+r)}, {v(b+8+r)}")
        A.e(f"v_cvt_pk_bf16_f32 {v(b+4)}, {v(b)}, {v(b+1)}")
        A.e(f"v_cvt_pk_bf16_f32 {v(b+5)}, {v(b+2)}, {v(b+3)}")
        A.e(f"buffer_store_dwordx2 {v(b+4,2)}, {v(t1)}, {s(S_OUT,4)}, {s(S_T)} offen")
        if u < 2:
            A.e(f"s_add_u32 {s(S_T)}, {s(S_T)}, {16*2048}")
    if ts:
        A.e("s_waitcnt vmcnt(0)")
        emit_ts(A, 1, S_TS, S_T, V_T, base=64)
    A.label(Lend)
    A.e("s_endpgm")
    nv = V_OF + max(D * 12, 48)
    nv = (nv + 7) // 8 * 8
    return dict(name=name, grid=256, block=256, lds=max(D * 4096 * 4, 49152), body=A.text(), nvgpr=nv,
                accum=(nv + 3) // 4 * 4)


if __name__ == "__main__":
    import sys
    k = gen_k2()
    open(sys.argv[1], "w").write(build_file([k]))
```

```python
import re
from asmlib import Asm

TRANS = ("v_exp_", "v_log_", "v_rcp_", "v_rsq_", "v_sqrt_", "v_sin_", "v_cos_")
_reg = re.compile(r"^-?\|?([vas])(\d+)\|?$|^-?\|?([vas])\[(\d+):(\d+)\]\|?$")


def regs_of(tok):
    tok = tok.strip()
    if tok == "m0":
        return [("s", "m0")]
    if tok in ("vcc", "vcc_lo", "vcc_hi"):
        return [("s", "vcc")]
    if tok == "exec":
        return [("s", "exec")]
    m = _reg.match(tok)
    if not m:
        return []
    if m.group(1):
        c, lo, hi = m.group(1), int(m.group(2)), int(m.group(2))
    else:
        c, lo, hi = m.group(3), int(m.group(4)), int(m.group(5))
    if c == "a":
        return [("v", 256 + i) for i in range(lo, hi + 1)]
    return [(c, i) for i in range(lo, hi + 1)]


class Tag:
    __slots__ = ("t", "regs")

    def __init__(self, t, regs=()):
        self.t, self.regs = t, frozenset(regs)

    def __eq__(self, o):
        return self.t == (o.t if isinstance(o, Tag) else o)

    def __hash__(self):
        return hash(self.t)

    def __getitem__(self, i):
        return self.t[i]


class TQ(list):
    pass


class Prog(Asm):
    def __init__(self):
        super().__init__()
        self.reset_state()

    def reset_state(self):
        self.pos = 0
        self.valu_w = {}
        self.trans_w = {}
        self.mfma_w = {}
        self.mfma_c = {}
        self.st_data = {}
        self.m0_w = -100
        self.ds_q = TQ()
        self.vm_q = TQ()
        self.skip = False

    def _wait(self, q, tags, name, cap):
        idx = -1
        for t in tags:
            for i, x in enumerate(q):
                if x == t:
                    idx = max(idx, i)
        if idx < 0:
            return
        n = len(q) - 1 - idx
        n = min(n, cap)
        self._emit(f"s_waitcnt {name}({n})")
        del q[: len(q) - n]

    def need_ds(self, tags):
        self._wait(self.ds_q, tags, "lgkmcnt", 15)

    def need_vm(self, tags):
        self._wait(self.vm_q, tags, "vmcnt", 63)

    def drain_ds(self):
        if self.ds_q:
            self._emit("s_waitcnt lgkmcnt(0)")
            self.ds_q = TQ()

    def vm_cap(self, n):
        if len(self.vm_q) > n:
            self._emit(f"s_waitcnt vmcnt({n})")
            del self.vm_q[: len(self.vm_q) - n]

    def _emit(self, text, states=1):
        self.lines.append("    " + text)
        if not self.skip:
            self.pos += states

    def nop(self, states):
        while states > 0:
            n = min(states, 16)
            self._emit(f"s_nop {n-1}", n)
            states -= n

    def e(self, text, tag=None, nds=(), nvm=()):
        if nds:
            self.need_ds(nds)
        if nvm:
            self.need_vm(nvm)
        if text.startswith("ds_") and len(self.ds_q) >= 15:
            self._emit("s_waitcnt lgkmcnt(14)")
            del self.ds_q[: len(self.ds_q) - 14]
        if text.startswith(("buffer_", "global_")) and len(self.vm_q) >= 62:
            self.vm_cap(61)
        body = text.split(";")[0].strip()
        mn, _, rest = body.partition(" ")
        ops = [o.strip() for o in rest.split(",")] if rest else []
        last = ops[-1].split() if ops else []
        mods = last[1:] if last else []
        if ops:
            ops[-1] = last[0]
        R = [regs_of(o) for o in ops]
        need = 0

        def req(ppos, ws):
            nonlocal need
            need = max(need, ws - (self.pos - ppos - 1))

        is_mfma = mn.startswith("v_mfma")
        is_valu = mn.startswith("v_") and not is_mfma
        is_ds = mn.startswith("ds_")
        is_vm = mn.startswith("buffer_") or mn.startswith("global_")
        is_lds_dma = is_vm and "lds" in mods
        reads, writes = [], []
        if is_mfma:
            writes = R[0]
            reads = R[1] + R[2] + R[3]
            passes = 8 if "32x32" in mn else 4
            for r in R[1] + R[2]:
                if r in self.valu_w:
                    req(self.valu_w[r], 2)
                if r in self.mfma_w:
                    p, ps, _ = self.mfma_w[r]
                    req(p, 12 if ps == 8 else 8)
            crng = (R[3][0], R[3][-1]) if R[3] else None
            for r in R[3]:
                if r in self.valu_w:
                    req(self.valu_w[r], 2)
                if r in self.mfma_w:
                    p, ps, rng = self.mfma_w[r]
                    if not (rng == crng and ps == passes):
                        req(p, 10 if ps == 8 else 6)
            for r in R[0]:
                if r in self.mfma_w and r not in R[3]:
                    p, ps, rng = self.mfma_w[r]
                    req(p, 10 if ps == 8 else 6)
        elif is_valu:
            if mn.startswith("v_permlane"):
                reads = R[0] + R[1]
                writes = R[0] + R[1]
                for r in reads:
                    if r in self.valu_w:
                        req(self.valu_w[r], 2)
            elif mn.startswith("v_cmp"):
                writes = R[0]
                reads = sum(R[1:], [])
            else:
                writes = R[0]
                reads = sum(R[1:], [])
                if mn.startswith("v_cndmask") and len(ops) == 3:
                    reads = reads + [("s", "vcc")]
            if mn.startswith("v_readfirstlane") or mn.startswith("v_readlane"):
                for r in reads:
                    if r in self.valu_w:
                        req(self.valu_w[r], 1)
            for r in reads:
                if r[0] == "s" and r in self.valu_w:
                    req(self.valu_w[r], 2)
                if r in self.trans_w:
                    req(self.trans_w[r], 1)
            for r in reads + writes:
                if r in self.mfma_w:
                    p, ps, _ = self.mfma_w[r]
                    req(p, 12 if ps == 8 else 8)
            for r in writes:
                if r in self.mfma_c:
                    p, ps = self.mfma_c[r]
                    req(p, 7 if ps == 8 else 3)
                if r in self.st_data:
                    req(self.st_data[r], 2)
        elif is_ds or is_vm:
            is_load = ("read" in mn or "load" in mn) and not is_lds_dma
            if is_load:
                writes = R[0]
                reads = sum(R[1:], [])
            else:
                reads = sum(R, [])
            for r in reads + writes:
                if r in self.mfma_w:
                    p, ps, _ = self.mfma_w[r]
                    req(p, 12 if ps == 8 else 8)
            for r in writes:
                if r in self.st_data:
                    req(self.st_data[r], 2)
                if r in self.mfma_c:
                    p, ps = self.mfma_c[r]
                    req(p, 7 if ps == 8 else 3)
            if is_vm:
                for r in reads:
                    if r[0] == "s" and r in self.valu_w:
                        req(self.valu_w[r], 5)
                if is_lds_dma:
                    req(self.m0_w, 1)
        else:
            for r in sum(R[1:], []) if R else []:
                if r[0] == "s" and r in self.valu_w:
                    req(self.valu_w[r], 2)
        touched = set(reads) | set(writes)
        for q in (self.ds_q, self.vm_q):
            for x in q:
                if isinstance(x, Tag) and x.regs & touched:
                    raise AssertionError(f"pending load {x.t} overlaps: {text}")
        if need > 0:
            self.nop(need)
        p = self.pos
        self._emit(text)
        if is_mfma:
            rng = (R[0][0], R[0][-1])
            for r in R[0]:
                self.mfma_w[r] = (p, passes, rng)
                self.valu_w.pop(r, None)
            for r in R[3]:
                self.mfma_c[r] = (p, passes)
        elif is_valu:
            for r in writes:
                self.valu_w[r] = p
                self.mfma_w.pop(r, None)
                if mn.startswith(TRANS):
                    self.trans_w[r] = p
                else:
                    self.trans_w.pop(r, None)
        elif is_ds:
            self.ds_q.append(Tag(tag, writes))
            for r in writes:
                self.mfma_w.pop(r, None)
                self.valu_w.pop(r, None)
        elif is_vm:
            self.vm_q.append(Tag(tag, writes))
            if "store" in mn and ("x4" in mn or "x3" in mn):
                for r in R[0]:
                    self.st_data[r] = p
            for r in writes:
                self.mfma_w.pop(r, None)
                self.valu_w.pop(r, None)
        else:
            if ops and ops[0] == "m0" and mn.startswith("s_"):
                self.m0_w = p
            elif R and mn.startswith("s_") and not mn.startswith(("s_cmp", "s_waitcnt", "s_cbranch", "s_branch")):
                for r in R[0]:
                    self.valu_w.pop(r, None)


def weave(P, mfmas, fillers, per_gap):
    f = list(fillers)
    for i, m in enumerate(mfmas):
        m()
        n = per_gap[i] if isinstance(per_gap, (list, tuple)) else per_gap
        for _ in range(n):
            if f:
                f.pop(0)()
    for x in f:
        x()
```

```python
import sys
from asmlib import *
from k1 import gen_k1
from k2 import gen_k2
paced = ((1,0),(2,1),(4,2),(5,3),(7,4),(8,5),(10,6),(11,7),(12,8))
out = sys.argv[1] if len(sys.argv) > 1 else "standalone__mha_block_cached__near_ridge.s"
txt = build_file([gen_k1(ts=False, n0=0, early=paced, touch=False, wo_touch=6), gen_k2(D=8, ts=False)])
open(out, "w").write(txt)
print(out, len(txt))
```

```python
import math, struct
from asmlib import *
from prog import Prog, weave

TS_OFF = 64 << 20
RING0, SLOT = 77824, 28672
CEXP = struct.unpack("<I", struct.pack("<f", math.log2(math.e) / math.sqrt(128.0)))[0]


def gen_k1(name="attn_kernel", ts=False, aux_kv=" nt", aux_x="", aux_wq=" nt", aux_tx="", aux_twq=" nt", aux_o="",
           touch=True, early=((0, 6), (4, 7), (8, 8)), n0=6, wo_touch=None):
    P = Prog()
    kernel_head(P, name)
    S_W, S_B, S_H, S_XCD, S_IDX = 16, 17, 18, 19, 3
    S_X, S_WQ, S_O = 20, 24, 28
    S_K, S_V, S_TX, S_TW = 32, 36, 40, 44
    S_TS, S_TV = 48, 52
    S_T, S_XO, S_WO, S_MX, S_MW, S_C, S_MSK = 72, 76, 77, 78, 79, 80, 81
    V_L = 1
    XD, WD, XA, WA, WB, KA, VA = 2, 6, 12, 16, 20, 24, 32
    VT = 44
    M0R, M1R, MC, L0, L1, VO = 56, 57, 58, 59, 60, 61
    QF, SB = 64, 96
    OA = 64
    PP = 128
    ACC = 128
    AF, BF = 0, 64
    KF = 0

    V_TS = 62

    def stamp(i):
        if ts:
            P.e(f"s_memrealtime {s(S_TV,2)}")
            P._emit("s_waitcnt lgkmcnt(0)")
            P.ds_q = []
            P.e(f"v_writelane_b32 {v(V_TS)}, {s(S_TV)}, {i}")

    def cstamp(i):
        if ts:
            P.e(f"s_memtime {s(S_TV,2)}")
            P._emit("s_waitcnt lgkmcnt(0)")
            P.ds_q = []
            P.e(f"v_writelane_b32 {v(V_TS)}, {s(S_TV)}, {i}")

    def store_stamps():
        P.e(f"s_add_u32 {s(S_TS)}, s12, {TS_OFF}")
        P.e(f"s_addc_u32 {s(S_TS+1)}, s13, 0")
        P.e(f"s_mov_b32 {s(S_TS+2)}, {1<<20}")
        P.e(f"s_mov_b32 {s(S_TS+3)}, 0x00020000")
        P.e(f"s_lshl_b32 {s(S_T)}, s2, 10")
        P.e(f"s_lshl_b32 {s(S_T+1)}, {s(S_W)}, 8")
        P.e(f"s_add_u32 {s(S_T)}, {s(S_T)}, {s(S_T+1)}")
        P.e(f"v_lshlrev_b32 {v(VT+2)}, 2, {v(V_L)}")
        P.e(f"buffer_store_dword {v(V_TS)}, {v(VT+2)}, {s(S_TS,4)}, {s(S_T)} offen")

    nbar = [0]

    def barrier():
        P.e("s_barrier")
        if ts is True or (ts and nbar[0] in ts):
            stamp(1 + nbar[0])
        nbar[0] += 1

    Lend = P.newlabel("k1end")
    Lload = P.newlabel("k1load")
    P.e("s_cmp_ge_u32 s2, 256")
    P.e(f"s_cbranch_scc1 {Lend}")
    P.e("s_load_dwordx8 s[4:11], s[0:1], 0")
    P.e("s_load_dwordx2 s[12:13], s[0:1], 56")
    P.e(f"v_lshrrev_b32 {v(VT)}, 6, v0")
    P.e(f"v_and_b32 {v(V_L)}, 63, v0")
    if ts:
        P.e(f"v_mov_b32 {v(V_TS)}, 0")
    P.e(f"s_and_b32 {s(S_XCD)}, s2, 7")
    P.e(f"v_readfirstlane_b32 {s(S_W)}, {v(VT)}")
    P.e(f"s_lshr_b32 {s(S_IDX)}, s2, 3")
    P.e(f"s_and_b32 {s(S_B)}, {s(S_IDX)}, 7")
    P.e(f"s_lshr_b32 {s(S_H)}, {s(S_IDX)}, 3")
    P.e(f"s_lshl_b32 {s(S_T)}, {s(S_XCD)}, 2")
    P.e(f"s_add_u32 {s(S_H)}, {s(S_H)}, {s(S_T)}")
    P.e(f"s_cmp_eq_u32 {s(S_W)}, 3")
    P.e(f"s_cbranch_scc1 {Lload}")

    t0, t1, t2, t3 = VT, VT + 1, VT + 2, VT + 3
    L = v(V_L)
    P.e(f"v_lshrrev_b32 {v(t0)}, 3, {L}")
    P.e(f"v_lshlrev_b32 {v(t0)}, 11, {v(t0)}")
    P.e(f"v_lshrrev_b32 {v(t1)}, 4, {L}")
    P.e(f"v_and_b32 {v(t2)}, 7, {L}")
    P.e(f"v_xor_b32 {v(t2)}, {v(t2)}, {v(t1)}")
    P.e(f"v_lshl_add_u32 {v(XD)}, {v(t2)}, 4, {v(t0)}")
    P.e(f"v_xor_b32 {v(XD+1)}, 64, {v(XD)}")
    P.e(f"v_add_u32 {v(XD+2)}, {2*15360}, {v(XD)}")
    P.e(f"v_add_u32 {v(XD+3)}, {3*15360}, {v(XD+1)}")
    P.e(f"v_add_u32 {v(XD+1)}, {15360}, {v(XD+1)}")
    P.e(f"v_and_b32 {v(t2)}, 15, {L}")
    P.e(f"v_lshlrev_b32 {v(t3)}, 2, {v(t1)}")
    P.e(f"v_xor_b32 {v(t2)}, {v(t2)}, {v(t3)}")
    P.e(f"v_lshlrev_b32 {v(t2)}, 4, {v(t2)}")
    P.e(f"v_lshl_add_u32 {v(t2)}, {v(t1)}, 13, {v(t2)}")
    P.e(f"s_lshl_b32 {s(S_T)}, {s(S_W)}, 15")
    P.e(f"v_add_u32 {v(WD)}, {s(S_T)}, {v(t2)}")
    for m in range(1, 6):
        P.e(f"v_add_u32 {v(WD+m)}, {m*98304-(m&1)*3072}, {v(WD)}")
    P.e(f"s_lshl_b32 {s(S_MX)}, {s(S_W)}, 12")
    P.e(f"s_lshl_b32 {s(S_MW)}, {s(S_W)}, 10")
    P.e(f"s_mul_i32 {s(S_T)}, {s(S_B)}, 96")
    P.e(f"s_lshl_b32 {s(S_T+1)}, {s(S_W)}, 5")
    P.e(f"s_add_u32 {s(S_T)}, {s(S_T)}, {s(S_T+1)}")
    P.e(f"s_lshl_b32 {s(S_T)}, {s(S_T)}, 11")
    P.e(f"s_lshl_b32 {s(S_T+1)}, {s(S_H)}, 8")
    P._emit("s_waitcnt lgkmcnt(0)")
    P.e(f"s_add_u32 {s(S_X)}, s4, {s(S_T)}")
    P.e(f"s_addc_u32 {s(S_X+1)}, s5, 0")
    P.e(f"s_mov_b32 {s(S_X+2)}, 65536")
    P.e(f"s_mov_b32 {s(S_X+3)}, 0x00020000")
    P.e(f"s_add_u32 {s(S_WQ)}, s10, {s(S_T+1)}")
    P.e(f"s_addc_u32 {s(S_WQ+1)}, s11, 0")
    P.e(f"s_sub_u32 {s(S_WQ+2)}, {8<<20}, {s(S_T+1)}")
    P.e(f"s_mov_b32 {s(S_WQ+3)}, 0x00020000")
    stamp(0)
    cstamp(60)

    def dma_ops(j):
        sl = RING0 + ((j + 2) % 3) * SLOT
        ops = []

        def xd(n):
            def f():
                if n == 0:
                    P.e(f"s_add_u32 m0, {s(S_MX)}, {sl+16384}")
                    P.e(f"s_mov_b32 {s(S_XO)}, {j*128}")
                P.e(f"buffer_load_dwordx4 {v(XD+n)}, {s(S_X,4)}, {s(S_XO)} offen offset:{n*1024}{aux_x} lds", tag=("D", j))
            return f

        def wd(m):
            def f():
                if m & 1 == 0:
                    P.e(f"s_add_u32 m0, {s(S_MW)}, {sl+(m>>1)*6144}")
                if m == 0:
                    P.e(f"s_mov_b32 {s(S_WO)}, {j*524288}")
                ins = f"buffer_load_dwordx4 {v(WD+m)}, {s(S_WQ,4)}, {s(S_WO)} offen offset:{(m&1)*3072}{aux_wq} lds"
                if m < 5:
                    P.e(ins, tag=("D", j))
                else:
                    lb = P.newlabel("w0")
                    P.e(f"s_cmp_lg_u32 {s(S_W)}, 0")
                    P.e(f"s_cbranch_scc1 {lb}")
                    P.skip = True
                    P.e(ins, tag=("X", j))
                    P.skip = False
                    P.label(lb)
            return f
        for m in range(6):
            ops.append(wd(m))
        for n in range(4):
            ops.append(xd(n))
        return ops

    def wait_stage(j):
        q = P.vm_q
        idx = max(i for i, x in enumerate(q) if x in (("D", j), ("X", j)))
        later = q[idx + 1:]
        n_all = len(later)
        n_com = len([x for x in later if x[0] != "X"])
        if n_all != n_com:
            lb = P.newlabel("wq")
            P.e(f"s_cmp_eq_u32 {s(S_W)}, 0")
            P.e(f"s_cbranch_scc1 {lb}")
            P.skip = True
            P._emit(f"s_waitcnt vmcnt({n_com})")
            P.skip = False
            P.label(lb)
        P._emit(f"s_waitcnt vmcnt({n_all})")
        del q[: idx + 1]

    for j in range(3):
        for f in dma_ops(j):
            f()
    P.e(f"v_and_b32 {v(t0)}, 31, {L}")
    P.e(f"v_lshrrev_b32 {v(t1)}, 5, {L}")
    P.e(f"v_bfe_u32 {v(t2)}, {L}, 1, 3")
    P.e(f"v_xor_b32 {v(t2)}, {v(t2)}, {v(t1)}")
    P.e(f"v_lshlrev_b32 {v(t2)}, 4, {v(t2)}")
    P.e(f"v_lshl_add_u32 {v(t2)}, {v(t0)}, 7, {v(t2)}")
    P.e(f"s_add_u32 {s(S_T)}, {s(S_MX)}, {RING0+16384}")
    P.e(f"v_add_u32 {v(XA)}, {s(S_T)}, {v(t2)}")
    for q in range(1, 4):
        P.e(f"v_xor_b32 {v(XA+q)}, {32*q}, {v(XA)}")
    P.e(f"v_and_b32 {v(t2)}, 15, {L}")
    P.e(f"v_xor_b32 {v(t2)}, {v(t2)}, {v(t1)}")
    P.e(f"v_lshlrev_b32 {v(t2)}, 4, {v(t2)}")
    P.e(f"v_lshl_add_u32 {v(KA)}, {v(t0)}, 8, {v(t2)}")
    for q in range(1, 8):
        P.e(f"v_xor_b32 {v(KA+q)}, {32*q}, {v(KA)}")
    P.e(f"v_bfe_u32 {v(t0)}, {L}, 2, 2")
    P.e(f"v_mul_u32_u24 {v(t2)}, 320, {v(t0)}")
    P.e(f"v_bfe_u32 {v(t3)}, {L}, 4, 1")
    P.e(f"v_lshl_add_u32 {v(t2)}, {v(t3)}, 5, {v(t2)}")
    P.e(f"v_and_b32 {v(t3)}, 1, {L}")
    P.e(f"v_lshl_add_u32 {v(t2)}, {v(t3)}, 4, {v(t2)}")
    P.e(f"v_bfe_u32 {v(t3)}, {L}, 1, 1")
    P.e(f"v_lshl_add_u32 {v(t2)}, {v(t3)}, 3, {v(t2)}")
    P.e(f"v_lshl_add_u32 {v(WA)}, {v(t1)}, 11, {v(t2)}")
    P.e(f"v_add_u32 {v(WA)}, {RING0}, {v(WA)}")
    P.e(f"v_lshl_add_u32 {v(VA)}, {v(t1)}, 10, {v(t2)}")
    for T in range(1, 4):
        P.e(f"v_xor_b32 {v(WA+T)}, {64*T}, {v(WA)}")
        P.e(f"v_xor_b32 {v(VA+T)}, {64*T}, {v(VA)}")
    for T in range(4):
        P.e(f"v_add_u32 {v(WB+T)}, {2*SLOT}, {v(WA+T)}")
        P.e(f"v_add_u32 {v(VA+4+T)}, 65536, {v(VA+T)}")
        P.e(f"v_add_u32 {v(VA+8+T)}, 131072, {v(VA+T)}")
    P.e(f"s_mul_i32 {s(S_T)}, {s(S_B)}, 6")
    P.e(f"s_lshl_b32 {s(S_T+1)}, {s(S_W)}, 1")
    P.e(f"s_add_u32 {s(S_T)}, {s(S_T)}, {s(S_T+1)}")
    for k in range(2):
        P.e(f"s_mul_i32 {s(S_T+1)}, {s(S_T)}, 43")
        P.e(f"s_lshr_b32 {s(S_T+1)}, {s(S_T+1)}, 7")
        P.e(f"s_mul_i32 {s(S_T+2)}, {s(S_T+1)}, 3")
        P.e(f"s_sub_u32 {s(S_T+2)}, {s(S_T)}, {s(S_T+2)}")
        P.e(f"s_mul_i32 {s(S_T+1)}, {s(S_T+1)}, {128*3072}")
        P.e(f"s_lshl_b32 {s(S_T+2)}, {s(S_T+2)}, 10")
        P.e(f"s_add_u32 {s(S_T+1)}, {s(S_T+1)}, {s(S_T+2)}")
        P.e(f"v_mov_b32 {v(t2+k)}, {s(S_T+1)}")
        if k == 0:
            P.e(f"s_add_u32 {s(S_T)}, {s(S_T)}, 1")
    P.e(f"v_and_b32 {v(t0)}, 16, {L}")
    P.e(f"v_cmp_ne_u32 vcc, 0, {v(t0)}")
    P.e(f"v_and_b32 {v(t0)}, 15, {L}")
    P.e(f"v_lshl_add_u32 {v(t0)}, {v(t1)}, 4, {v(t0)}")
    P.e(f"v_cndmask_b32 {v(t2)}, {v(t2)}, {v(t3)}, vcc")
    P.e(f"v_lshl_add_u32 {v(VO)}, {v(t0)}, 4, {v(t2)}")
    P.e(f"s_mul_i32 {s(S_T)}, {s(S_H)}, {4*3072}")
    P.e(f"s_add_u32 {s(S_O)}, s12, {s(S_T)}")
    P.e(f"s_addc_u32 {s(S_O+1)}, s13, 0")
    P.e(f"s_sub_u32 {s(S_O+2)}, {768*4096*2}, {s(S_T)}")
    P.e(f"s_mov_b32 {s(S_O+3)}, 0x00020000")
    P.e(f"s_mov_b32 {s(S_C)}, {CEXP}")
    P.e(f"s_mov_b32 {s(S_MSK)}, 0xffff0000")
    P.e(f"v_mov_b32 {v(M0R)}, 0xff800000")
    P.e(f"v_mov_b32 {v(M1R)}, 0xff800000")
    P.e(f"v_mov_b32 {v(L0)}, 0")
    P.e(f"v_mov_b32 {v(L1)}, 0")

    def qreads(i, st):
        sg = (i + 2) % 3
        bf = st & 1
        ops = [lambda: P.e(f"ds_read_b128 {a(BF+bf*4,4)}, {v(XA+st)} offset:{sg*SLOT}", tag=("B", i, st))]
        for T in range(4):
            for sec in range(2):
                base = (WA if sg < 2 else WB) + T
                off = (sg * SLOT if sg < 2 else 0) + st * 4096 + sec * 1024
                ops.append(lambda T=T, sec=sec, base=base, off=off: P.e(
                    f"ds_read_b64_tr_b16 {a(AF+bf*16+T*4+sec*2,2)}, {v(base)} offset:{off}", tag=("A", i, st, T)))
        return ops

    def qmfma(i, st, T):
        bf = st & 1
        c = "0" if (i == 0 and st == 0) else v(ACC + T * 16, 16)
        return lambda: P.e(f"v_mfma_f32_32x32x16_bf16 {v(ACC+T*16,16)}, {a(AF+bf*16+T*4,4)}, {a(BF+bf*4,4)}, {c}",
                           nds=[("B", i, st), ("A", i, st, T)])

    def kreads(kc):
        bf = (kc + 1) & 1
        return [lambda q=q: P.e(f"ds_read_b128 {a(KF+bf*32+q*4,4)}, {v(KA+q)} offset:{(kc&7)*8192}", tag=("K", kc, q))
                for q in range(8)]

    wait_stage(0)
    barrier()
    for f in qreads(0, 0):
        f()
    pend = []
    for i in range(16):
        for st in range(3):
            fill = qreads(i, st + 1)
            mf = [qmfma(i, st, T) for T in range(4)]
            for T in range(4):
                mf[T]()
                for _ in range(3):
                    if fill:
                        fill.pop(0)()
                if pend:
                    pend.pop(0)()
        while pend:
            pend.pop(0)()
        P.drain_ds()
        qmfma(i, 3, 0)()
        if i < 15:
            wait_stage(i + 1)
        barrier()
        fill = qreads(i + 1, 0) if i < 15 else kreads(0)
        pend = dma_ops(i + 3) if i + 3 < 16 else []
        for T in range(1, 4):
            for _ in range(3):
                if fill:
                    fill.pop(0)()
            qmfma(i, 3, T)()
            if pend:
                pend.pop(0)()
        while fill:
            fill.pop(0)()

    def qcvt(T):
        return [lambda r=r: P.e(f"v_cvt_pk_bf16_f32 {v(QF+T*8+r)}, {v(ACC+T*16+2*r)}, {v(ACC+T*16+2*r+1)}") for r in range(8)]

    def kmfma(kc, q):
        bf = kc & 1
        c = "0" if q == 0 else v(SB + bf * 16, 16)
        return lambda: P.e(f"v_mfma_f32_32x32x16_bf16 {v(SB+bf*16,16)}, {a(KF+(1-bf)*32+q*4,4)}, {v(QF+q*4,4)}, {c}", nds=[("K", kc, q)])

    def kvalu(kc):
        bf = kc & 1
        ops = []
        for r in range(8):
            m = M0R + (r & 1)
            ops.append(lambda r=r, m=m: P.e(f"v_max3_f32 {v(m)}, {v(m)}, {v(SB+bf*16+2*r)}, {v(SB+bf*16+2*r+1)}"))
            ops.append(lambda r=r: P.e(f"v_cvt_pk_bf16_f32 {v(PP+kc*8+r)}, {v(SB+bf*16+2*r)}, {v(SB+bf*16+2*r+1)}"))
        return ops

    for f in qcvt(0) + qcvt(1):
        f()
    for kc in range(16):
        mf = [kmfma(kc, q) for q in range(8)]
        nxt = kreads(kc + 1) if kc < 15 else []
        if kc + 1 == 8:
            nxt = [lambda q=q: P.e(f"v_add_u32 {v(KA+q)}, 65536, {v(KA+q)}") for q in range(8)] + nxt
        if kc == 0:
            c2, c3 = qcvt(2), qcvt(3)
            fill = c2[:4] + c2[4:] + c3[:4] + c3[4:] + nxt
            weave(P, mf, fill, [4, 4, 4, 4, 2, 2, 2, 2])
            continue
        fill = nxt + kvalu(kc - 1)
        if kc & 1 and kc < 15:
            P.drain_ds()
            mf[0]()
            barrier()
            mf = [lambda: None] + mf[1:]
        n = len(fill)
        weave(P, mf, fill, [3, 3, 2, 4, 3, 3, 3, 3] if n == 24 else ([4, 4, 4, 4, 4, 4, 4, 4] if n > 24 else [0, 0, 0, 4, 3, 3, 3, 3]))
    for f in kvalu(15):
        f()
    stamp(40)
    P.e(f"v_max_f32 {v(M0R)}, {v(M0R)}, {v(M1R)}")
    P.e(f"v_mov_b32 {v(M1R)}, {v(M0R)}")
    P.e(f"v_permlane32_swap_b32 {v(M0R)}, {v(M1R)}")
    P.e(f"v_max_f32 {v(M0R)}, {v(M0R)}, {v(M1R)}")
    P.e(f"v_cvt_pk_bf16_f32 {v(M0R)}, {v(M0R)}, {v(M0R)}")
    P.e(f"v_and_b32 {v(M0R)}, {s(S_MSK)}, {v(M0R)}")
    P.e(f"v_mul_f32 {v(MC)}, {s(S_C)}, {v(M0R)}")

    def exps(t):
        ops = []
        for r in range(8):
            pr = PP + t * 8 + r
            ta, tb = VT + (r & 1) * 2, VT + (r & 1) * 2 + 1
            ops += [
                lambda pr=pr, ta=ta: P.e(f"v_lshlrev_b32 {v(ta)}, 16, {v(pr)}"),
                lambda pr=pr, tb=tb: P.e(f"v_and_b32 {v(tb)}, {s(S_MSK)}, {v(pr)}"),
                lambda ta=ta: P.e(f"v_fma_f32 {v(ta)}, {v(ta)}, {s(S_C)}, -{v(MC)}"),
                lambda tb=tb: P.e(f"v_fma_f32 {v(tb)}, {v(tb)}, {s(S_C)}, -{v(MC)}"),
                lambda ta=ta: P.e(f"v_exp_f32 {v(ta)}, {v(ta)}"),
                lambda tb=tb: P.e(f"v_exp_f32 {v(tb)}, {v(tb)}"),
                lambda ta=ta: P.e(f"v_add_f32 {v(L0)}, {v(L0)}, {v(ta)}"),
                lambda tb=tb: P.e(f"v_add_f32 {v(L1)}, {v(L1)}, {v(tb)}"),
                lambda pr=pr, ta=ta, tb=tb: P.e(f"v_cvt_pk_bf16_f32 {v(pr)}, {v(ta)}, {v(tb)}"),
            ]
        return ops

    def vreads(t):
        bf = t & 1
        rg = 16 + t if t < 4 else t - 4
        st_, off = rg >> 3, (rg & 7) * 8192
        ops = []
        for u in range(2):
            for T in range(4):
                for sec in range(2):
                    ops.append(lambda u=u, T=T, sec=sec: P.e(
                        f"ds_read_b64_tr_b16 {a(KF+bf*32+(u*4+T)*4+sec*2,2)}, {v(VA+st_*4+T)} offset:{off+u*4096+sec*2048}",
                        tag=("V", t, u, T)))
        return ops

    def vmfma(t, u, T):
        bf = t & 1
        c = "0" if (t == 0 and u == 0) else v(OA + T * 16, 16)
        return lambda: P.e(f"v_mfma_f32_32x32x16_bf16 {v(OA+T*16,16)}, {a(KF+bf*32+(u*4+T)*4,4)}, {v(PP+t*8+u*4,4)}, {c}",
                           nds=[("V", t, u, T)])

    def lfin():
        return [
            lambda: P.e(f"v_add_f32 {v(L0)}, {v(L0)}, {v(L1)}"),
            lambda: P.e(f"v_mov_b32 {v(L1)}, {v(L0)}"),
            lambda: P.e(f"v_permlane32_swap_b32 {v(L0)}, {v(L1)}"),
            lambda: P.e(f"v_add_f32 {v(L0)}, {v(L0)}, {v(L1)}"),
            lambda: P.e(f"v_rcp_f32 {v(L0)}, {v(L0)}"),
        ]

    for f in exps(0) + exps(1):
        f()
    barrier()
    for f in vreads(0):
        f()
    for t in range(16):
        mf = [vmfma(t, u, T) for u in range(2) for T in range(4)]
        nxt = vreads(t + 1) if t < 15 else []
        ex = (exps(2 * t + 2) + exps(2 * t + 3)) if t < 7 else (lfin() if t == 7 else [])
        if t & 1 and t < 15:
            weave(P, mf[:6], ex, len(ex) // 6 + 1)
            barrier()
            weave(P, [lambda: None] + mf[6:], nxt, [6, 5, 5])
        else:
            per = [2 + len(ex) // 8 + 1] * 8
            fill = []
            e = list(ex)
            rd = list(nxt)
            k = len(e) // 8 + 1
            for g in range(8):
                mf[g]()
                for _ in range(3):
                    if rd:
                        rd.pop(0)()
                for _ in range(k):
                    if e:
                        e.pop(0)()
            assert not rd and not e
    for T in range(4):
        for sub in range(2):
            b = OA + T * 16 + sub * 8
            for r in range(8):
                P.e(f"v_mul_f32 {v(b+r)}, {v(b+r)}, {v(L0)}")
            for r in range(4):
                P.e(f"v_cvt_pk_bf16_f32 {v(b+r)}, {v(b+2*r)}, {v(b+2*r+1)}")
            if sub == 0:
                P.e(f"s_mov_b32 {s(S_T)}, {T*3072}")
            P.e(f"buffer_store_dwordx4 {v(b,4)}, {v(VO)}, {s(S_O,4)}, {s(S_T)} offen offset:{sub*512}{aux_o}", tag="st")
    if ts:
        stamp(41)
        P.vm_cap(0)
        stamp(42)
        cstamp(61)
        store_stamps()
    P.e("s_endpgm")

    P.label(Lload)
    P.reset_state()
    nbar[0] = 0
    KD, VD, TXV, TWV, TD = 2, 6, 7, 8, 10
    P.e(f"v_lshrrev_b32 {v(t1)}, 4, {L}")
    P.e(f"v_and_b32 {v(t2)}, 15, {L}")
    P.e(f"v_xor_b32 {v(t3)}, {v(t2)}, {v(t1)}")
    P.e(f"v_lshlrev_b32 {v(t3)}, 4, {v(t3)}")
    P.e(f"v_lshl_add_u32 {v(KD)}, {v(t1)}, 8, {v(t3)}")
    for n in range(1, 4):
        P.e(f"v_xor_b32 {v(KD+n)}, {64*n}, {v(KD)}")
    P.e(f"v_lshlrev_b32 {v(t3)}, 2, {v(t1)}")
    P.e(f"v_xor_b32 {v(t3)}, {v(t2)}, {v(t3)}")
    P.e(f"v_lshlrev_b32 {v(t3)}, 4, {v(t3)}")
    P.e(f"v_lshl_add_u32 {v(VD)}, {v(t1)}, 8, {v(t3)}")
    P.e(f"s_mul_i32 {s(S_T)}, {s(S_IDX)}, {24*2048}")
    P.e(f"v_and_b32 {v(t0)}, 31, {L}")
    P.e(f"v_lshlrev_b32 {v(t0)}, 11, {v(t0)}")
    P.e(f"v_lshrrev_b32 {v(t2)}, 5, {L}")
    P.e(f"v_lshl_add_u32 {v(t0)}, {v(t2)}, 7, {v(t0)}")
    P.e(f"v_add_u32 {v(TXV)}, {s(S_T)}, {v(t0)}")
    P.e(f"s_lshl_b32 {s(S_T)}, {s(S_IDX)}, 14")
    P.e(f"v_lshlrev_b32 {v(t0)}, 19, {v(t1)}")
    P.e(f"v_bfe_u32 {v(t2)}, {L}, 3, 1")
    P.e(f"v_lshl_add_u32 {v(t0)}, {v(t2)}, 13, {v(t0)}")
    P.e(f"v_and_b32 {v(t2)}, 7, {L}")
    P.e(f"v_lshl_add_u32 {v(t0)}, {v(t2)}, 7, {v(t0)}")
    P.e(f"v_add_u32 {v(TWV)}, {s(S_T)}, {v(t0)}")
    P.e(f"s_lshl_b32 {s(S_T)}, {s(S_B)}, 5")
    P.e(f"s_add_u32 {s(S_T)}, {s(S_T)}, {s(S_H)}")
    P.e(f"s_lshl_b32 {s(S_T)}, {s(S_T)}, 17")
    P.e(f"s_lshl_b32 {s(S_T+1)}, {s(S_XCD)}, 10")
    P._emit("s_waitcnt lgkmcnt(0)")
    P.e(f"s_mov_b32 {s(S_TX)}, s4")
    P.e(f"s_mov_b32 {s(S_TX+1)}, s5")
    P.e(f"s_mov_b32 {s(S_TX+2)}, {768*2048}")
    P.e(f"s_mov_b32 {s(S_TX+3)}, 0x00020000")
    P.e(f"s_add_u32 {s(S_TW)}, s10, {s(S_T+1)}")
    P.e(f"s_addc_u32 {s(S_TW+1)}, s11, 0")
    P.e(f"s_sub_u32 {s(S_TW+2)}, {8<<20}, {s(S_T+1)}")
    P.e(f"s_mov_b32 {s(S_TW+3)}, 0x00020000")
    P.e(f"s_add_u32 {s(S_K)}, s6, {s(S_T)}")
    P.e(f"s_addc_u32 {s(S_K+1)}, s7, 0")
    P.e(f"s_mov_b32 {s(S_K+2)}, 131072")
    P.e(f"s_mov_b32 {s(S_K+3)}, 0x00020000")
    P.e(f"s_add_u32 {s(S_V)}, s8, {s(S_T)}")
    P.e(f"s_addc_u32 {s(S_V+1)}, s9, 0")
    P.e(f"s_mov_b32 {s(S_V+2)}, 131072")
    P.e(f"s_mov_b32 {s(S_V+3)}, 0x00020000")
    if touch:
        d = TD
        for n in range(4):
            P.e(f"s_mov_b32 {s(S_T)}, {n<<21}")
            P.e(f"buffer_load_dword {v(d)}, {v(TWV)}, {s(S_TW,4)}, {s(S_T)} offen{aux_twq}", tag="t")
            d += 1
            P.e("s_mov_b32 exec_lo, 0x00ffffff")
            P.e("s_mov_b32 exec_hi, 0x00ffffff")
            for k in range(2):
                P.e(f"buffer_load_dword {v(d)}, {v(TXV)}, {s(S_TX,4)}, 0 offen offset:{(2*n+k)*256}{aux_tx}", tag="t")
                d += 1
            P.e("s_mov_b64 exec, -1")

    issued = [0]

    def chunk():
        c = issued[0]
        issued[0] += 1
        P.vm_cap(55)
        if c < 16:
            rg, srd, go = c, S_K, c * 8192
        else:
            t = c - 16
            rg, srd, go = (16 + t if t < 4 else t - 4), S_V, t * 8192
        for hf in range(2):
            P.e(f"s_mov_b32 m0, {rg*8192+hf*4096}")
            P.e(f"s_mov_b32 {s(S_T)}, {go+hf*4096}")
            for n in range(4):
                vo = KD + n if c < 16 else VD
                P.e(f"buffer_load_dwordx4 {v(vo)}, {s(srd,4)}, {s(S_T)} offen offset:{n*1024}{aux_kv} lds", tag=("C", c))

    free = [9]

    def fill_free():
        while issued[0] < free[0] and len(P.vm_q) <= 55:
            chunk()

    def land(c):
        for cc in range(c + 1):
            assert issued[0] > cc
            if ("C", cc) in P.vm_q:
                P.need_vm([("C", cc)])
                fill_free()

    for c in range(n0):
        chunk()
    stamp(0)
    early = dict(early)
    for i in range(16):
        if i in early:
            while issued[0] <= early[i]:
                chunk()
        barrier()
        if i == 14:
            free[0] = 13
            while issued[0] < free[0]:
                chunk()
        if i == 15:
            free[0] = 16
            while issued[0] < free[0]:
                chunk()
    for m in range(8):
        land(2 * m + 1)
        barrier()
        free[0] = min(32, 20 + 2 * m)
        fill_free()
    def wotouch():
        P.e("s_load_dwordx2 s[4:5], s[0:1], 32")
        P.e(f"v_lshrrev_b32 {v(t0)}, 2, {L}")
        P.e(f"v_lshlrev_b32 {v(t0)}, 11, {v(t0)}")
        P.e(f"v_and_b32 {v(t1)}, 3, {L}")
        P.e(f"v_lshl_add_u32 {v(t0)}, {v(t1)}, 7, {v(t0)}")
        P.e(f"s_lshr_b32 {s(S_T)}, {s(S_XCD)}, 1")
        P.e(f"s_lshl_b32 {s(S_T)}, {s(S_T)}, 9")
        P.e(f"s_lshl_b32 {s(S_T+1)}, {s(S_IDX)}, 18")
        P.e(f"s_add_u32 {s(S_T)}, {s(S_T)}, {s(S_T+1)}")
        P._emit("s_waitcnt lgkmcnt(0)")
        P.e(f"s_add_u32 {s(S_TW)}, s4, {s(S_T)}")
        P.e(f"s_addc_u32 {s(S_TW+1)}, s5, 0")
        P.e(f"s_sub_u32 {s(S_TW+2)}, {8<<20}, {s(S_T)}")
        P.e(f"s_mov_b32 {s(S_TW+3)}, 0x00020000")
        for n in range(8):
            P.e(f"s_mov_b32 {s(S_T)}, {n<<15}")
            P.e(f"buffer_load_dword {v(TD+n)}, {v(t0)}, {s(S_TW,4)}, {s(S_T)} offen", tag="t")

    for m in range(8):
        if wo_touch == m:
            wotouch()
        land(16 + 2 * m + 1)
        barrier()
        assert issued[0] >= min(32, 16 + 2 * m + 4), (m, issued)
    assert issued[0] == 32
    P.vm_cap(0)
    if ts:
        store_stamps()
    P.label(Lend)
    P.e("s_endpgm")
    return dict(name=name, grid=256, block=256, lds=163840, body=P.text(), nvgpr=256 + 72, accum=256)


if __name__ == "__main__":
    import sys
    open(sys.argv[1], "w").write(build_file([gen_k1(ts=True)]))
```

```python
from asmlib import *

TS_OFF = 64 << 20


def emit_ts(A, slot, sws, stmp, vtmp, wgreg="s2", base=0, sw=24):
    A.e(f"s_memrealtime {s(stmp,2)}")
    A.e("s_waitcnt lgkmcnt(0)")
    A.e(f"v_mov_b32 {v(vtmp)}, {s(stmp)}")
    A.e(f"v_mov_b32 {v(vtmp+2)}, 0")
    A.e(f"s_lshl_b32 {s(stmp)}, {wgreg}, 10")
    A.e(f"s_lshl_b32 {s(stmp+1)}, {s(sw)}, 8")
    A.e(f"s_add_u32 {s(stmp)}, {s(stmp)}, {s(stmp+1)}")
    A.e(f"s_add_u32 {s(stmp)}, {s(stmp)}, {256*1024}")
    A.e(f"buffer_store_dword {v(vtmp)}, {v(vtmp+2)}, {s(sws,4)}, {s(stmp)} offen offset:{slot*4}")


def gen_k2(name="oproj_kernel", D=8, compute=True, ts=False, aux_wo="", aux_o="", skew_j=(0, 0), skew_i=(0, 0)):
    A = Asm()
    kernel_head(A, name)
    NSTEP = 32
    V_LANE, V_DMA, V_O, V_TR = 1, 2, 6, 8
    V_T = 12
    V_A, V_ACC, V_OF = 16, 48, 96
    S_WO, S_OS, S_OUT, S_TS = 12, 16, 20, 32
    S_W, S_LB, S_SW, S_SO, S_CNT = 24, 25, 26, 27, 28
    S_RT, S_CT, S_T = 29, 30, 36
    Lend = A.newlabel("k2end")
    A.e("s_cmp_ge_u32 s2, 256")
    A.e(f"s_cbranch_scc1 {Lend}")
    A.e("s_load_dwordx4 s[4:7], s[0:1], 32")
    A.e("s_load_dwordx2 s[8:9], s[0:1], 56")
    A.e(f"v_and_b32 {v(V_LANE)}, 63, v0")
    A.e(f"v_lshrrev_b32 {v(V_T)}, 6, v0")
    A.e("s_and_b32 s3, s2, 7")
    A.e(f"s_lshr_b32 {s(S_T)}, s2, 3")
    A.e(f"v_readfirstlane_b32 {s(S_W)}, {v(V_T)}")
    A.e(f"s_and_b32 {s(S_RT)}, s3, 1")
    A.e(f"s_lshl_b32 {s(S_RT)}, {s(S_RT)}, 3")
    A.e(f"s_and_b32 {s(S_T+1)}, {s(S_T)}, 7")
    A.e(f"s_add_u32 {s(S_RT)}, {s(S_RT)}, {s(S_T+1)}")
    A.e(f"s_lshr_b32 {s(S_CT)}, s3, 1")
    A.e(f"s_lshl_b32 {s(S_CT)}, {s(S_CT)}, 2")
    A.e(f"s_lshr_b32 {s(S_T+1)}, {s(S_T)}, 3")
    A.e(f"s_add_u32 {s(S_CT)}, {s(S_CT)}, {s(S_T+1)}")
    t0, t1, t2 = V_T, V_T + 1, V_T + 2
    A.e(f"v_lshrrev_b32 {v(t0)}, 3, {v(V_LANE)}")
    A.e(f"v_lshlrev_b32 {v(t0)}, 11, {v(t0)}")
    A.e(f"v_and_b32 {v(t1)}, 1, {v(V_LANE)}")
    A.e(f"v_lshl_add_u32 {v(t0)}, {v(t1)}, 4, {v(t0)}")
    A.e(f"v_bfe_u32 {v(t1)}, {v(V_LANE)}, 1, 2")
    A.e(f"v_bfe_u32 {v(t2)}, {v(V_LANE)}, 4, 1")
    A.e(f"v_xor_b32 {v(t1)}, {v(t1)}, {v(t2)}")
    for blk in range(4):
        if blk & 1:
            A.e(f"v_xor_b32 {v(t2)}, 2, {v(t1)}")
            A.e(f"v_lshl_add_u32 {v(V_DMA+blk)}, {v(t2)}, 5, {v(t0)}")
        else:
            A.e(f"v_lshl_add_u32 {v(V_DMA+blk)}, {v(t1)}, 5, {v(t0)}")
        if blk:
            A.e(f"v_add_u32 {v(V_DMA+blk)}, {blk*(16384-1024)}, {v(V_DMA+blk)}")
    A.e(f"v_lshlrev_b32 {v(V_O)}, 4, {v(V_LANE)}")
    A.e(f"s_mul_i32 {s(S_LB)}, {s(S_W)}, {D*4096}")
    A.e(f"v_lshrrev_b32 {v(t0)}, 4, {v(V_LANE)}")
    A.e(f"v_bfe_u32 {v(t1)}, {v(V_LANE)}, 2, 2")
    A.e(f"v_lshl_add_u32 {v(t2)}, {v(t0)}, 3, {v(t1)}")
    A.e(f"v_lshlrev_b32 {v(t2)}, 7, {v(t2)}")
    A.e(f"v_and_b32 {v(t0)}, 1, {v(t0)}")
    A.e(f"v_lshlrev_b32 {v(t0)}, 1, {v(t0)}")
    A.e(f"v_bfe_u32 {v(t1)}, {v(V_LANE)}, 3, 1")
    A.e(f"v_or_b32 {v(t0)}, {v(t0)}, {v(t1)}")
    A.e(f"v_and_b32 {v(t1)}, 3, {v(V_LANE)}")
    A.e(f"v_lshl_add_u32 {v(t2)}, {v(t1)}, 3, {v(t2)}")
    A.e(f"v_add_u32 {v(t2)}, {s(S_LB)}, {v(t2)}")
    for c in range(4):
        A.e(f"v_xor_b32 {v(t1)}, {c}, {v(t0)}")
        A.e(f"v_lshl_add_u32 {v(V_TR+c)}, {v(t1)}, 5, {v(t2)}")
    A.e("s_waitcnt lgkmcnt(0)")
    A.e(f"s_lshl_b32 {s(S_T)}, {s(S_W)}, 21")
    A.e(f"s_lshl_b32 {s(S_T+1)}, {s(S_CT)}, 7")
    A.e(f"s_add_u32 {s(S_T)}, {s(S_T)}, {s(S_T+1)}")
    A.e(f"s_add_u32 {s(S_WO)}, s4, {s(S_T)}")
    A.e(f"s_addc_u32 {s(S_WO+1)}, s5, 0")
    A.e(f"s_sub_u32 {s(S_WO+2)}, {4096*1024*2}, {s(S_T)}")
    A.e(f"s_mov_b32 {s(S_WO+3)}, 0x00020000")
    A.e(f"s_lshl_b32 {s(S_T)}, {s(S_RT)}, 7")
    A.e(f"s_lshl_b32 {s(S_T+1)}, {s(S_W)}, 5")
    A.e(f"s_add_u32 {s(S_T)}, {s(S_T)}, {s(S_T+1)}")
    A.e(f"s_mul_i32 {s(S_T)}, {s(S_T)}, 3072")
    A.e(f"s_add_u32 {s(S_OS)}, s8, {s(S_T)}")
    A.e(f"s_addc_u32 {s(S_OS+1)}, s9, 0")
    A.e(f"s_mov_b32 {s(S_OS+2)}, {32*3072}")
    A.e(f"s_mov_b32 {s(S_OS+3)}, 0x00020000")
    A.e(f"s_mov_b32 {s(S_OUT)}, s6")
    A.e(f"s_mov_b32 {s(S_OUT+1)}, s7")
    A.e(f"s_mov_b32 {s(S_OUT+2)}, {768*1024*2}")
    A.e(f"s_mov_b32 {s(S_OUT+3)}, 0x00020000")
    if ts:
        A.e(f"s_add_u32 {s(S_TS)}, s8, {TS_OFF}")
        A.e(f"s_addc_u32 {s(S_TS+1)}, s9, 0")
        A.e(f"s_mov_b32 {s(S_TS+2)}, {1<<20}")
        A.e(f"s_mov_b32 {s(S_TS+3)}, 0x00020000")
        emit_ts(A, 0, S_TS, S_T, V_T, base=64)
    A.e(f"s_lshr_b32 {s(S_T)}, s2, 6")
    A.e(f"s_and_b32 {s(S_T)}, {s(S_T)}, {skew_j[0]}")
    A.e(f"s_mul_i32 {s(S_T)}, {s(S_T)}, {skew_j[1]}")
    A.e(f"s_lshr_b32 {s(S_T+1)}, s2, 3")
    A.e(f"s_and_b32 {s(S_T+1)}, {s(S_T+1)}, {skew_i[0]}")
    A.e(f"s_mul_i32 {s(S_T+1)}, {s(S_T+1)}, {skew_i[1]}")
    A.e(f"s_add_u32 {s(S_T)}, {s(S_T)}, {s(S_T+1)}")
    A.e(f"s_and_b32 {s(S_T)}, {s(S_T)}, 31")
    A.e(f"s_lshl_b32 {s(S_SW)}, {s(S_T)}, 16")
    A.e(f"s_mul_i32 {s(S_SO)}, {s(S_T)}, 3072")

    nv = [0]

    def dma(slot):
        A.e(f"s_add_u32 m0, {s(S_LB)}, {slot*4096}")
        A.e("s_nop 0")
        for blk in range(4):
            A.e(f"buffer_load_dwordx4 {v(V_DMA+blk)}, {s(S_WO,4)}, {s(S_SW)} offen offset:{blk*1024}{aux_wo} lds")
        A.e(f"s_add_u32 {s(S_SW)}, {s(S_SW)}, 65536")
        A.e(f"s_and_b32 {s(S_SW)}, {s(S_SW)}, {(1<<21)-1}")

    def oload(slot):
        for u in range(3):
            A.e(f"buffer_load_dwordx4 {v(V_OF+slot*12+u*4,4)}, {v(V_O)}, {s(S_OS,4)}, {s(S_SO)} offen offset:{u*1024}{aux_o}")
        A.e(f"s_add_u32 {s(S_SO)}, {s(S_SO)}, 3072")
        A.e(f"s_cmp_eq_u32 {s(S_SO)}, {32*3072}")
        A.e(f"s_cselect_b32 {s(S_SO)}, 0, {s(S_SO)}")

    def trreads(slot, buf):
        for c in range(4):
            for sec in range(2):
                A.e(f"ds_read_b64_tr_b16 {v(V_A+buf*16+c*4+sec*2,2)}, {v(V_TR+c)} offset:{slot*4096+sec*512}")

    def mfmas(slot, buf, first):
        for u in range(3):
            for c in range(4):
                acc = V_ACC + (u * 4 + c) * 4
                csrc = "0" if first else v(acc, 4)
                A.e(f"v_mfma_f32_16x16x32_bf16 {v(acc,4)}, {v(V_A+buf*16+c*4,4)}, {v(V_OF+slot*12+u*4,4)}, {csrc}")

    for j in range(D):
        dma(j)
        oload(j)
    extra = 1 if ts else 0
    A.e(f"s_waitcnt vmcnt({7*(D-1)})")
    if compute:
        trreads(0, 0)
    for r in range(48):
        A.e(f"v_mov_b32 {v(V_ACC+r)}, 0")

    def step(j, jj, refill, last):
        slot = j % D
        buf = j & 1
        if not last:
            A.e(f"s_waitcnt vmcnt({7*jj})")
            if compute:
                trreads((j + 1) % D, buf ^ 1)
                A.e("s_waitcnt lgkmcnt(8)")
        else:
            if compute:
                A.e("s_waitcnt lgkmcnt(0)")
        if refill:
            dma(slot)
        if compute:
            mfmas(slot, buf, False)
        if refill:
            oload(slot)

    U = D if D % 2 == 0 else 2 * D
    nref = NSTEP - D
    nloop = nref // U
    rem = nref - nloop * U
    if nloop > 0:
        Lloop = A.newlabel("k2loop")
        A.e(f"s_mov_b32 {s(S_CNT)}, {nloop}")
        A.label(Lloop)
        for j in range(U):
            step(j, D - 2, True, False)
        A.e(f"s_sub_u32 {s(S_CNT)}, {s(S_CNT)}, 1")
        A.e(f"s_cmp_lg_u32 {s(S_CNT)}, 0")
        A.e(f"s_cbranch_scc1 {Lloop}")
    j0 = nloop * U
    for j in range(j0, NSTEP):
        refill = j < nref
        issued = min(j + D, NSTEP)
        step(j, issued - (j + 2), refill, j == NSTEP - 1)
    A.nop(16)
    A.e("s_barrier")
    A.e(f"s_mul_i32 {s(S_T)}, {s(S_W)}, 12288")
    A.e(f"v_add_u32 {v(t0)}, {s(S_T)}, {v(V_O)}")
    for t in range(12):
        A.e(f"ds_write_b128 {v(t0)}, {v(V_ACC+t*4,4)} offset:{t*1024}")
    A.e("s_waitcnt lgkmcnt(0)")
    A.e("s_barrier")
    A.e(f"s_lshl_b32 {s(S_T)}, {s(S_W)}, 10")
    A.e(f"v_add_u32 {v(t0)}, {s(S_T)}, {v(V_O)}")
    R = V_OF
    for u in range(3):
        for p in range(4):
            A.e(f"ds_read_b128 {v(R+(u*4+p)*4,4)}, {v(t0)} offset:{p*12288+u*4096}")
    A.e(f"v_and_b32 {v(t1)}, 15, {v(V_LANE)}")
    A.e(f"v_lshlrev_b32 {v(t1)}, 11, {v(t1)}")
    A.e(f"v_lshrrev_b32 {v(t2)}, 4, {v(V_LANE)}")
    A.e(f"v_lshl_add_u32 {v(t1)}, {v(t2)}, 3, {v(t1)}")
    A.e(f"s_mul_i32 {s(S_T)}, {s(S_RT)}, {48*2048}")
    A.e(f"s_lshl_b32 {s(S_T+1)}, {s(S_CT)}, 7")
    A.e(f"s_add_u32 {s(S_T)}, {s(S_T)}, {s(S_T+1)}")
    A.e(f"s_lshl_b32 {s(S_T+1)}, {s(S_W)}, 5")
    A.e(f"s_add_u32 {s(S_T)}, {s(S_T)}, {s(S_T+1)}")
    for u in range(3):
        A.e(f"s_waitcnt lgkmcnt({8-4*u})")
        b = R + u * 16
        for r in range(4):
            A.e(f"v_add_f32 {v(b+r)}, {v(b+r)}, {v(b+4+r)}")
            A.e(f"v_add_f32 {v(b+8+r)}, {v(b+8+r)}, {v(b+12+r)}")
        for r in range(4):
            A.e(f"v_add_f32 {v(b+r)}, {v(b+r)}, {v(b+8+r)}")
        A.e(f"v_cvt_pk_bf16_f32 {v(b+4)}, {v(b)}, {v(b+1)}")
        A.e(f"v_cvt_pk_bf16_f32 {v(b+5)}, {v(b+2)}, {v(b+3)}")
        A.e(f"buffer_store_dwordx2 {v(b+4,2)}, {v(t1)}, {s(S_OUT,4)}, {s(S_T)} offen")
        if u < 2:
            A.e(f"s_add_u32 {s(S_T)}, {s(S_T)}, {16*2048}")
    if ts:
        A.e("s_waitcnt vmcnt(0)")
        emit_ts(A, 1, S_TS, S_T, V_T, base=64)
    A.label(Lend)
    A.e("s_endpgm")
    nv = V_OF + max(D * 12, 48)
    nv = (nv + 7) // 8 * 8
    return dict(name=name, grid=256, block=256, lds=max(D * 4096 * 4, 49152), body=A.text(), nvgpr=nv,
                accum=(nv + 3) // 4 * 4)


if __name__ == "__main__":
    import sys
    k = gen_k2()
    open(sys.argv[1], "w").write(build_file([k]))
```
